```python
import torch

def _softmax(x, axis=-1):
    return torch.softmax(x, dim=axis)
def _gelu(x):
    return torch.nn.functional.gelu(x, approximate="tanh")
def _silu(x):
    return torch.nn.functional.silu(x)
def _sigmoid(x):
    return torch.sigmoid(x)
def _layernorm(x, axis=-1, eps=1e-5):
    m = x.mean(dim=axis, keepdim=True)
    v = x.var(dim=axis, keepdim=True, unbiased=False)
    return (x - m) / torch.sqrt(v + eps)
def _scatter_add(tgt, idx, src, axis=0):
    return tgt.clone().index_add_(axis, idx, src)
def _segment_sum(src, seg, n):
    out = torch.zeros((n,) + src.shape[1:], dtype=src.dtype)
    return out.index_add_(0, seg, src)
def _pad(x, pw):
    flat = tuple(v for pair in reversed(pw) for v in pair)
    return torch.nn.functional.pad(x, flat)

kernel_name = 'concat_heads__grouped_kv_mqa__compressed_kv_cla__prompt'

def setup_inputs():

    _w = (lambda a: (lambda t: t.to(torch.bfloat16) if t.is_floating_point() else t)(torch.as_tensor(a)))
    def _A_setup():
        B, S, D, H = 1, 2048, 576, 32
        Dh = D // H
        return {
            "x": _w((lambda *s: torch.randn(*s, dtype=torch.bfloat16) * 0.05)(B, S, D)),
            "wq": _w((lambda *s: torch.randn(*s, dtype=torch.bfloat16) * 0.8)(D, H * Dh)),
            "wk": _w((lambda *s: torch.randn(*s, dtype=torch.bfloat16) * 0.8)(D, Dh)),
            "wv": _w((lambda *s: torch.randn(*s, dtype=torch.bfloat16) * 0.05)(D, Dh)),
            "wo": _w((lambda *s: torch.randn(*s, dtype=torch.bfloat16) * 0.05)(H * Dh, D)),
        }
    _A_in = _A_setup()

    def _B_setup():
        B, H, Sq, Sk, D, M = 1, 32, 2048, 2048, 128, 576
        Dc = 4 * D
        return {
            "x": _w((lambda *s: torch.randn(*s, dtype=torch.bfloat16) * 3.2)(B, Sq, M)),
            "c_kv": _w((lambda *s: torch.randn(*s, dtype=torch.bfloat16) * 0.1)(B, Sk, Dc)),
            "w_q": _w((lambda *s: torch.randn(*s, dtype=torch.bfloat16) * 6.4)(M, H, D) * (M ** -0.5)),
            "w_uk": _w((lambda *s: torch.randn(*s, dtype=torch.bfloat16) * 6.4)(Dc, H, D) * (Dc ** -0.5)),
            "w_uv": _w((lambda *s: torch.randn(*s, dtype=torch.bfloat16) * 0.1)(Dc, H, D) * (Dc ** -0.5)),
            "w_o": _w((lambda *s: torch.randn(*s, dtype=torch.bfloat16) * 0.1)(H, D, M) * ((H * D) ** -0.5)),
        }
    _B_in = _B_setup()

    return {
        "A_x": _A_in["x"],
        "A_wq": _A_in["wq"],
        "A_wk": _A_in["wk"],
        "A_wv": _A_in["wv"],
        "A_wo": _A_in["wo"],
        "B_x": _B_in["x"],
        "B_c_kv": _B_in["c_kv"],
        "B_w_q": _B_in["w_q"],
        "B_w_uk": _B_in["w_uk"],
        "B_w_uv": _B_in["w_uv"],
        "B_w_o": _B_in["w_o"],
    }

def reference(A_x, A_wq, A_wk, A_wv, A_wo, B_x, B_c_kv, B_w_q, B_w_uk, B_w_uv, B_w_o):
    def _A_ref(x, wq, wk, wv, wo):
        B, S, D = x.shape
        H = 32
        Dh = D // H
        q = (lambda x, *d: x.permute(*d))((x @ wq).reshape(B, S, H, Dh), 0, 2, 1, 3)
        k = x @ wk
        v = x @ wv
        scores = torch.einsum("bhqd,bkd->bhqk", q, k) * (Dh ** -0.5)
        p = _softmax(scores, axis=-1)
        o = torch.einsum("bhqk,bkd->bhqd", p, v)
        return (lambda x, *d: x.permute(*d))(o, 0, 2, 1, 3).reshape(B, S, H * Dh) @ wo

    def _B_ref(x, c_kv, w_q, w_uk, w_uv, w_o):
        B, Sq, M = x.shape[0], x.shape[1], x.shape[2]
        Sk = c_kv.shape[1]
        H, D = w_q.shape[1], w_q.shape[2]
        q = torch.einsum("bqm,mhd->bhqd", x, w_q)
        k = torch.einsum("bkc,chd->bhkd", c_kv, w_uk)
        v = torch.einsum("bkc,chd->bhkd", c_kv, w_uv)
        scores = torch.einsum("bhqd,bhkd->bhqk", q, k) * (D ** -0.5)
        off = Sk - Sq
        qi = torch.arange(Sq)[:, None]
        kj = torch.arange(Sk)[None, :]
        cmask = kj <= (qi + off)
        scores = torch.where(cmask[None, None], scores, -1e9)
        p = _softmax(scores, axis=-1)
        ctx = torch.einsum("bhqk,bhkd->bhqd", p, v)
        return torch.einsum("bhqd,hdm->bqm", ctx, w_o)

    a = _A_ref(A_x, A_wq, A_wk, A_wv, A_wo)
    b = _B_ref(B_x, B_c_kv, B_w_q, B_w_uk, B_w_uv, B_w_o)
    return torch.concatenate([a, b], axis=-1)
```

```python
import sys
def kernel(name, body, iters=200, nv=128, na=0):
    s = f"""; @launch grid=(1,1,1) block=(1024,1,1) lds=0
.amdgcn_target "amdgcn-amd-amdhsa--gfx950"
.text
.globl {name}
.p2align 8
.type {name},@function
{name}:
    s_load_dwordx2 s[4:5], s[0:1], 0
    s_load_dwordx2 s[6:7], s[0:1], 8
    s_waitcnt lgkmcnt(0)
    s_mov_b32 s12, s6
    s_mov_b32 s13, s7
    s_mov_b32 s14, 0x400000
    s_mov_b32 s15, 0x00020000
    v_lshrrev_b32 v1, 6, v0
    s_nop 0
    v_readfirstlane_b32 s20, v1
"""
    for i in range(2, nv):
        s += f"    v_mov_b32 v{i}, 0x3c000000\n"
    for i in range(na):
        s += f"    v_accvgpr_write_b32 a{i}, 0\n"
    s += f"""    s_mov_b32 s21, {iters}
    s_barrier
    s_memtime s[16:17]
    s_waitcnt lgkmcnt(0)
L_loop:
{body}
    s_sub_u32 s21, s21, 1
    s_cmp_lg_u32 s21, 0
    s_cbranch_scc1 L_loop
    s_nop 15
    s_nop 15
    s_memtime s[18:19]
    s_waitcnt lgkmcnt(0)
    s_sub_u32 s18, s18, s16
    v_mov_b32 v2, s18
    s_lshl_b32 s22, s2, 4
    s_add_u32 s22, s22, s20
    s_lshl_b32 s22, s22, 2
    v_mov_b32 v3, s22
    buffer_store_dword v2, v3, s[12:15], 0 offen
    s_waitcnt vmcnt(0)
    s_endpgm
.section .rodata,"a"
.p2align 6
.amdhsa_kernel {name}
  .amdhsa_next_free_vgpr {nv+na}
  .amdhsa_next_free_sgpr 32
  .amdhsa_accum_offset {nv}
  .amdhsa_group_segment_fixed_size 0
  .amdhsa_kernarg_size 16
  .amdhsa_user_sgpr_count 2
  .amdhsa_user_sgpr_kernarg_segment_ptr 1
  .amdhsa_system_sgpr_workgroup_id_x 1
.end_amdhsa_kernel
"""
    return s

if __name__ == "__main__":
    which = sys.argv[1]
    if which == "exp":
        body = "".join(f"    v_exp_f32 v{2+i}, v{66+i%32}\n" for i in range(64))
    elif which == "add":
        body = "".join(f"    v_add_f32 v{2+i}, v{66+i%32}, v{98+i%16}\n" for i in range(64))
    elif which == "cvt":
        body = "".join(f"    v_cvt_pk_bf16_f32 v{2+i}, v{66+i%32}, v{98+i%16}\n" for i in range(64))
    elif which == "pkadd":
        body = "".join(f"    v_pk_add_f32 v[{2+2*i}:{3+2*i}], v[{66+2*(i%16)}:{67+2*(i%16)}], v[{98+2*(i%8)}:{99+2*(i%8)}]\n" for i in range(32))
    elif which == "mfma":
        body = "".join(f"    v_mfma_f32_32x32x16_bf16 v[{2+16*(i%4)}:{17+16*(i%4)}], v[66:69], v[70:73], v[{2+16*(i%4)}:{17+16*(i%4)}]\n" for i in range(16))
    elif which.startswith("mix"):
        a, b = [int(x) for x in which[3:].split("_")]
        body = ""
        for i in range(16):
            body += f"    v_mfma_f32_32x32x16_bf16 v[{2+16*(i%2)}:{17+16*(i%2)}], v[66:69], v[70:73], v[{2+16*(i%2)}:{17+16*(i%2)}]\n"
            for j in range(a):
                body += f"    v_exp_f32 v{34+(i*a+j)%16}, v{80+j}\n"
            for j in range(b):
                body += f"    v_add_f32 v{50+(i*b+j)%16}, v{90+j}, v{100+j}\n"
    open(sys.argv[2], "w").write(kernel("mb_kernel", body))
```

```python
import sys
from gen_mb1 import kernel
which = sys.argv[1]
mode, a, b = which.split("_"); a = int(a); b = int(b)
body = ""
na = 0
for i in range(16):
    if mode == "acc":
        na = 32
        body += f"    v_mfma_f32_32x32x16_bf16 a[{16*(i%2)}:{15+16*(i%2)}], v[66:69], v[70:73], a[{16*(i%2)}:{15+16*(i%2)}]\n"
    elif mode == "accab":
        na = 48
        body += f"    v_mfma_f32_32x32x16_bf16 a[{16*(i%2)}:{15+16*(i%2)}], a[32:35], a[36:39], a[{16*(i%2)}:{15+16*(i%2)}]\n"
    elif mode == "chain":
        body += f"    v_mfma_f32_32x32x16_bf16 v[2:17], v[66:69], v[70:73], v[2:17]\n"
    elif mode == "m16":
        body += f"    v_mfma_f32_16x16x32_bf16 v[{2+4*(i%4)}:{5+4*(i%4)}], v[66:69], v[70:73], v[{2+4*(i%4)}:{5+4*(i%4)}]\n"
        body += f"    v_mfma_f32_16x16x32_bf16 v[{18+4*(i%4)}:{21+4*(i%4)}], v[66:69], v[70:73], v[{18+4*(i%4)}:{21+4*(i%4)}]\n"
    elif mode == "nom":
        pass
    elif mode == "pk":
        body += f"    v_mfma_f32_32x32x16_bf16 v[{2+16*(i%2)}:{17+16*(i%2)}], v[66:69], v[70:73], v[{2+16*(i%2)}:{17+16*(i%2)}]\n"
    for j in range(a):
        body += f"    v_exp_f32 v{34+(i*a+j)%16}, v{80+j}\n"
    for j in range(b):
        if mode == "pk":
            r = 50+2*((i*b+j)%8)
            body += f"    v_pk_add_f32 v[{r}:{r+1}], v[{90+2*(j%4)}:{91+2*(j%4)}], v[{100+2*(j%4)}:{101+2*(j%4)}]\n"
        else:
            body += f"    v_add_f32 v{50+(i*b+j)%16}, v{90+j}, v{100+j}\n"
open(sys.argv[2], "w").write(kernel("mb_kernel", body, na=na))
```

```python
import sys
from gen_mb1 import kernel
nread = int(sys.argv[1])
def step(sb):
    S = [32, 48]; P = [64, 72]
    slots = [[] for _ in range(16)]
    for g in range(8):
        C = "v[80:95]" if g == 0 else f"v[{S[sb]}:{S[sb]+15}]"
        slots[g].append(f"v_mfma_f32_32x32x16_bf16 v[{S[sb]}:{S[sb]+15}], a[{64+4*g}:{67+4*g}], a[{4*g}:{3+4*g}], {C}")
    for kg in range(2):
        for dt in range(4):
            o = 128+16*dt
            slots[8+4*kg+dt].append(f"v_mfma_f32_32x32x16_bf16 v[{o}:{o+15}], a[{128+4*(4*kg+dt)}:{131+4*(4*kg+dt)}], v[{P[1-sb]+4*kg}:{P[1-sb]+4*kg+3}], v[{o}:{o+15}]")
    def sm(s, p, e, slot):
        if e < 16: slots[slot].append(f"v_exp_f32 v{s+e}, v{s+e}")
        if 1 <= e <= 16: slots[slot].append(f"v_add_f32 v19, v19, v{s+e-1}")
        if e >= 2 and e % 2 == 0: slots[slot].append(f"v_cvt_pk_bf16_f32 v{p+(e-2)//2}, v{s+e-2}, v{s+e-1}")
    for e in range(6, 17): sm(S[1-sb], P[1-sb], e, e-6)
    for e in range(0, 6): sm(S[sb], P[sb], e, 10+e)
    if nread >= 16:
        for g in range(8): slots[(g+1)].append(f"ds_read_b128 a[{64+4*g}:{67+4*g}], v20 offset:{g*1024}")
        for g in range(8): slots[(9+g) % 16].append(f"ds_read_b128 a[{128+4*g}:{131+4*g}], v20 offset:{8192+g*1024}")
    elif nread == 8:
        for g in range(8): slots[2*g+1].append(f"ds_read_b128 a[{64+4*g}:{67+4*g}], v20 offset:{g*1024}")
    out = ""
    for sl in range(16):
        if sl in (0, 8) and nread: out += "    s_waitcnt lgkmcnt(7)\n"
        for x in slots[sl]: out += "    " + x + "\n"
    return out
body = "    v_and_b32 v20, 63, v0\n    v_lshlrev_b32 v20, 4, v20\n" + step(0) + step(1)
open(sys.argv[2], "w").write(kernel("mb_kernel", body, iters=200, nv=256, na=192))
```

```python
KNAME = "concat_heads__grouped_kv_mqa__compressed_kv_cla__prompt"

KA = dict(A_x=0, A_wq=8, A_wk=16, A_wv=24, A_wo=32, B_x=40, B_ckv=48, B_wq=56, B_wuk=64, B_wuv=72, B_wo=80,
          out=88, dbg=96, ws=104)
SZ = dict(A_x=2048*576*2, A_wq=576*576*2, A_wk=576*18*2, A_wv=576*18*2, A_wo=576*576*2, B_x=2048*576*2,
          B_ckv=2048*512*2, B_wq=576*4096*2, B_wuk=512*4096*2, B_wuv=512*4096*2, B_wo=4096*576*2,
          out=2048*1152*2)
MB = 1 << 20
WS_KB = 0
WS_VB = 16*MB
WS_CTX = 32*MB
WS_QA = 48*MB
WS_KVA = 52*MB
WS_OA = 53*MB
WS_FLAG = 57*MB
WS_WKV = 56*MB
KCH = 20480
KA0_OFF = 0
KA1_OFF = 8192
VA_OFF = 9216
KVA_SIZE = 8*KCH

class Asm:
    def __init__(self):
        self.lines = []
        self.uid = 0
    def __call__(self, s):
        for l in s.split("\n"):
            l = l.strip()
            if l:
                self.lines.append("    " + l)
    def label(self, l):
        self.lines.append(l + ":")
    def comment(self, c):
        self.lines.append("    ; " + c)
    def newlabel(self, base):
        self.uid += 1
        return f"L_{base}_{self.uid}"
    def text(self):
        return "\n".join(self.lines) + "\n"

def vr(b, n=1):
    return f"v{b}" if n == 1 else f"v[{b}:{b+n-1}]"
def ar(b, n=1):
    return f"a{b}" if n == 1 else f"a[{b}:{b+n-1}]"
def sr(b, n=1):
    return f"s{b}" if n == 1 else f"s[{b}:{b+n-1}]"

def kernel_header(a, name):
    a.lines.append(f".globl {name}")
    a.lines.append(".p2align 8")
    a.lines.append(f".type {name},@function")
    a.label(name)

def kernel_desc(name, vgpr, agpr, sgpr=102):
    acc = (vgpr + 3) // 4 * 4
    nfv = acc + agpr if agpr else vgpr
    return f""".p2align 6
.amdhsa_kernel {name}
  .amdhsa_next_free_vgpr {nfv}
  .amdhsa_next_free_sgpr {sgpr}
  .amdhsa_accum_offset {acc}
  .amdhsa_group_segment_fixed_size 0
  .amdhsa_kernarg_size 112
  .amdhsa_user_sgpr_count 2
  .amdhsa_user_sgpr_kernarg_segment_ptr 1
  .amdhsa_system_sgpr_workgroup_id_x 1
.end_amdhsa_kernel
"""

def make_srd(a, dst, ptr, nbytes, off=0):
    if off:
        a(f"s_add_u32 s{dst}, s{ptr}, {off}")
        a(f"s_addc_u32 s{dst+1}, s{ptr+1}, 0")
    else:
        a(f"s_mov_b32 s{dst}, s{ptr}")
        a(f"s_mov_b32 s{dst+1}, s{ptr+1}")
    a(f"s_mov_b32 s{dst+2}, {nbytes}")
    a(f"s_mov_b32 s{dst+3}, 0x00020000")

import os
PROF = bool(os.environ.get("PROF"))
WS_PROF = 200*MB
def stamp(a, idx, sreg=90):
    if PROF:
        a(f"s_memtime s[{sreg+2*idx}:{sreg+2*idx+1}]")
        if idx == 0: a("s_memrealtime s[88:89]")
        a("s_waitcnt lgkmcnt(0)")
def stamp_flush(a, n, wsptr, wave_sreg, nwaves, sreg=90, vtmp=1):
    if not PROF: return
    a("s_waitcnt vmcnt(0)")
    a(f"s_memtime s[{sreg+2*n}:{sreg+2*n+1}]")
    a("s_memrealtime s[86:87]")
    a("s_waitcnt lgkmcnt(0)")
    a("s_sub_u32 s87, s86, s88")
    make_srd(a, 80, wsptr, 16*MB, WS_PROF)
    a(f"s_mul_i32 s84, s2, {nwaves}")
    a(f"s_add_u32 s84, s84, s{wave_sreg}")
    a("s_lshl_b32 s84, s84, 6")
    a(f"v_mov_b32 v{vtmp}, 0")
    for i in range(n+1):
        a(f"s_sub_u32 s85, s{sreg+2*i}, s{sreg}")
        if i == 0: a(f"s_mov_b32 s85, s{sreg}")
        a(f"v_mov_b32 v{vtmp+1}, s85")
        a(f"buffer_store_dword v{vtmp+1}, v{vtmp}, s[80:83], s84 offen offset:{4*i}")
    a(f"v_mov_b32 v{vtmp+1}, s87")
    a(f"buffer_store_dword v{vtmp+1}, v{vtmp}, s[80:83], s84 offen offset:60")
    a(f"v_mov_b32 v{vtmp+1}, s88")
    a(f"buffer_store_dword v{vtmp+1}, v{vtmp}, s[80:83], s84 offen offset:56")
    a("s_waitcnt vmcnt(0)")
```

```python
from common import *
import math, struct
def f32bits(x): return struct.unpack("<I", struct.pack("<f", x))[0]

def gen_g576(a, L_end, mode, s_idx, actreg=lambda ks: ar(4*ks, 4)):
    a("v_lshrrev_b32 v1, 6, v0")
    a("v_and_b32 v0, 63, v0")
    a("v_readfirstlane_b32 s34, v1")
    a(f"s_and_b32 s32, s{s_idx}, 15")
    a(f"s_lshr_b32 s33, s{s_idx}, 4")
    a("s_load_dwordx2 s[6:7], s[0:1], 104")
    if mode == "proj":
        a("s_load_dwordx4 s[8:11], s[0:1], 0")
    else:
        a("s_load_dwordx2 s[10:11], s[0:1], 32")
        a("s_load_dwordx2 s[4:5], s[0:1], 88")
    a("s_waitcnt lgkmcnt(0)")
    if mode == "proj":
        make_srd(a, 12, 8, SZ["A_x"])
        a(f"s_add_u32 s36, s6, {WS_WKV}")
        a("s_addc_u32 s37, s7, 0")
        a("s_cmp_lt_u32 s33, 9")
        a("s_cselect_b32 s16, s10, s36")
        a("s_cselect_b32 s17, s11, s37")
        a(f"s_mov_b32 s18, {576*128}")
        a(f"s_cselect_b32 s18, {SZ['A_wq']}, s18")
        a("s_mov_b32 s19, 0x00020000")
        a("s_movk_i32 s35, 128")
        a("s_cselect_b32 s35, 1152, s35")
        a("s_cselect_b32 s38, s33, 0")
        a("s_lshl_b32 s38, s38, 7")
    else:
        make_srd(a, 12, 6, 2048*1152, WS_OA)
        make_srd(a, 16, 10, SZ["A_wo"])
        a("s_mov_b32 s35, 1152")
        a("s_lshl_b32 s38, s33, 7")
    a("v_lshrrev_b32 v2, 3, v0")
    a("v_mul_lo_u32 v3, v2, s35")
    a("v_lshrrev_b32 v4, 1, v2")
    a("v_and_b32 v4, 1, v4")
    a("v_lshlrev_b32 v4, 2, v4")
    a("v_and_b32 v5, 7, v0")
    a("v_xor_b32 v4, v4, v5")
    a("v_lshl_add_u32 v2, v4, 4, v3")
    a("s_mul_i32 s36, s34, 144")
    a("s_mul_i32 s37, s36, s35")
    a("s_add_u32 s37, s37, s38")
    a("s_lshl_b32 s39, s35, 3")
    a("s_mul_i32 s36, s34, 18432")
    for j in range(18):
        a(f"s_add_u32 m0, s36, {j*1024}")
        a("s_nop 0")
        a("buffer_load_dwordx4 v2, s[16:19], s37 offen lds")
        a("s_add_u32 s37, s37, s39")
    a("v_and_b32 v3, 31, v0")
    a("s_lshl_b32 s36, s32, 7")
    a("s_lshl_b32 s37, s34, 5")
    a("s_add_u32 s36, s36, s37")
    a("v_add_u32 v3, s36, v3")
    a("s_movk_i32 s37, 1152")
    a("v_mul_lo_u32 v4, v3, s37")
    a("v_lshrrev_b32 v5, 5, v0")
    a("v_lshl_add_u32 v4, v5, 4, v4")
    for ks in range(36):
        a(f"buffer_load_dwordx4 {actreg(ks)}, v4, s[12:15], 0 offen offset:{ks*32}")
    a("v_lshrrev_b32 v6, 2, v0")
    a("v_and_b32 v6, 3, v6")
    a("v_lshl_add_u32 v7, v5, 3, v6")
    a("v_lshlrev_b32 v7, 7, v7")
    a("v_lshrrev_b32 v8, 4, v0")
    a("v_and_b32 v8, 1, v8")
    a("v_lshlrev_b32 v8, 5, v8")
    a("v_and_b32 v9, 3, v0")
    a("v_lshlrev_b32 v9, 3, v9")
    a("v_add3_u32 v7, v7, v8, v9")
    a("v_lshrrev_b32 v6, 1, v6")
    a("v_lshlrev_b32 v6, 6, v6")
    a("v_add_u32 v6, v7, v6")
    a("v_xor_b32 v7, 64, v6")
    a("v_add_u32 v8, 0x8000, v6")
    a("v_add_u32 v9, 0x8000, v7")
    a("v_add_u32 v10, 0x10000, v6")
    a("v_add_u32 v11, 0x10000, v7")
    ACC = 32
    for i in range(32): a(f"v_mov_b32 v{ACC+i}, 0")
    a("s_waitcnt vmcnt(0)")
    a("s_barrier")
    WF = [64, 72]
    def rd(ks, st):
        blk = ks // 16; o = (ks % 16) * 2048
        for ct in range(2):
            for r in range(2):
                a(f"ds_read_b64_tr_b16 {vr(WF[st]+4*ct+2*r,2)}, v{6+2*blk+ct} offset:{o+r*512}")
    def loop(swapV):
        rd(0, 0)
        for ks in range(36):
            if ks + 1 < 36:
                rd(ks+1, (ks+1) % 2)
                a("s_waitcnt lgkmcnt(4)")
            else:
                a("s_waitcnt lgkmcnt(0)")
            for ct in range(2):
                acc = vr(ACC+16*ct, 16); W_ = vr(WF[ks % 2]+4*ct, 4); A_ = actreg(ks)
                if swapV and ct == 1: a(f"v_mfma_f32_32x32x16_bf16 {acc}, {A_}, {W_}, {acc}")
                else: a(f"v_mfma_f32_32x32x16_bf16 {acc}, {W_}, {A_}, {acc}")
        a("s_nop 15")
        a("s_nop 3")
    def rowmajor_store(srd, pitch, scale):
        a(f"s_movk_i32 s37, {pitch}")
        a("v_mul_lo_u32 v4, v3, s37")
        a("v_lshl_add_u32 v4, v5, 3, v4")
        if scale is not None:
            a(f"s_mov_b32 s37, 0x{f32bits(scale):08x}")
            for i in range(32): a(f"v_mul_f32 v{ACC+i}, s37, v{ACC+i}")
        for ct in range(2):
            for j in range(4):
                b = ACC + 16*ct + 4*j; t = 64 + 2*(4*ct+j)
                a(f"v_cvt_pk_bf16_f32 v{t}, v{b}, v{b+1}")
                a(f"v_cvt_pk_bf16_f32 v{t+1}, v{b+2}, v{b+3}")
                a(f"buffer_store_dwordx2 {vr(t,2)}, v4, s[{srd}:{srd+3}], s38 offen offset:{ct*64+j*16}")
    if mode == "out":
        make_srd(a, 20, 4, SZ["out"])
        loop(False)
        rowmajor_store(20, 2304, None)
        a(f"s_branch {L_end}")
        return
    Lkv = a.newlabel("kv")
    a("s_cmp_ge_u32 s33, 9")
    a(f"s_cbranch_scc1 {Lkv}")
    make_srd(a, 20, 6, 2048*1152, WS_QA)
    loop(False)
    rowmajor_store(20, 1152, math.log2(math.e) / math.sqrt(18.0))
    a(f"s_branch {L_end}")
    a.label(Lkv)
    make_srd(a, 20, 6, KVA_SIZE, WS_KVA)
    loop(True)
    a("s_lshl_b32 s36, s32, 2")
    a("s_add_u32 s36, s36, s34")
    a("s_lshr_b32 s39, s36, 3")
    a(f"s_mul_i32 s39, s39, {KCH}")
    a("s_and_b32 s36, s36, 7")
    for j in range(4): a(f"v_cvt_pk_bf16_f32 v{64+j}, v{ACC+2*j}, v{ACC+2*j+1}")
    a("v_lshlrev_b32 v4, 4, v0")
    a("s_lshl_b32 s37, s36, 10")
    a("s_add_u32 s37, s37, s39")
    a("buffer_store_dwordx4 v[64:67], v4, s[20:23], s37 offen")
    a(f"v_cvt_pk_bf16_f32 v68, v{ACC+8}, v{ACC+9}")
    a("v_lshlrev_b32 v4, 2, v0")
    a("v_cmp_gt_u32 vcc, 32, v0")
    a("s_and_saveexec_b64 s[40:41], vcc")
    a("s_lshl_b32 s37, s36, 7")
    a("s_add_u32 s37, s37, s39")
    a(f"s_add_u32 s37, s37, {KA1_OFF}")
    a("buffer_store_dword v68, v4, s[20:23], s37 offen")
    a("s_mov_b64 exec, s[40:41]")
    V = ACC + 16
    for j in range(8): a(f"v_cvt_pk_bf16_f32 v{72+j}, v{V+2*j}, v{V+2*j+1}")
    a("v_and_b32 v6, 31, v0")
    a("v_cmp_eq_u32 vcc, 18, v6")
    a("v_mov_b32 v7, 0x3f803f80")
    a("s_nop 1")
    for j in range(8): a(f"v_cndmask_b32 v{72+j}, v{72+j}, v7, vcc")
    a("v_cmp_eq_u32 vcc, 19, v6")
    a("v_mov_b32 v7, 0")
    a("s_nop 1")
    for j in range(8): a(f"v_cndmask_b32 v{72+j}, v{72+j}, v7, vcc")
    a("v_mul_u32_u24 v4, 320, v5")
    a("v_lshl_add_u32 v4, v6, 4, v4")
    a("s_mul_i32 s37, s36, 1280")
    a("s_add_u32 s37, s37, s39")
    a(f"s_add_u32 s37, s37, {VA_OFF}")
    a("v_cmp_gt_u32 vcc, 20, v6")
    a("s_and_saveexec_b64 s[40:41], vcc")
    a("buffer_store_dwordx4 v[72:75], v4, s[20:23], s37 offen")
    a("buffer_store_dwordx4 v[76:79], v4, s[20:23], s37 offen offset:640")
    a("s_mov_b64 exec, s[40:41]")
    a(f"s_branch {L_end}")
```

```python
from common import *
import os

def gen_k1_main(a, L_end):
    NS = 16
    SLOT = 49152
    a("s_load_dwordx2 s[4:5], s[0:1], 48")
    a("s_load_dwordx4 s[8:11], s[0:1], 64")
    a("s_load_dwordx2 s[6:7], s[0:1], 104")
    a("s_and_b32 s24, s2, 7")
    a("s_lshr_b32 s25, s2, 3")
    a("s_and_b32 s26, s25, 7")
    a("s_lshr_b32 s27, s25, 3")
    a("s_lshl_b32 s24, s24, 2")
    a("s_add_u32 s27, s27, s24")
    a("v_lshrrev_b32 v1, 6, v0")
    a("v_and_b32 v0, 63, v0")
    a("v_readfirstlane_b32 s29, v1")
    a("s_waitcnt lgkmcnt(0)")
    stamp(a, 0)
    make_srd(a, 12, 4, SZ["B_ckv"])
    make_srd(a, 16, 8, SZ["B_wuk"])
    make_srd(a, 72, 10, SZ["B_wuv"])
    make_srd(a, 20, 6, 16*MB, WS_KB)
    make_srd(a, 76, 6, 16*MB, WS_VB)
    vdA = [2, 3]; vdW = 4
    a("v_lshrrev_b32 v10, 3, v0")
    a("v_lshlrev_b32 v10, 10, v10")
    a("v_lshrrev_b32 v11, 4, v0")
    a("v_and_b32 v12, 7, v0")
    a("v_xor_b32 v13, v11, v12")
    a(f"v_lshl_add_u32 v{vdA[0]}, v13, 4, v10")
    a("v_xor_b32 v13, 4, v13")
    a(f"v_lshl_add_u32 v{vdA[1]}, v13, 4, v10")
    a("v_lshlrev_b32 v12, 2, v11")
    a("v_and_b32 v13, 15, v0")
    a("v_xor_b32 v12, v12, v13")
    a("v_lshlrev_b32 v12, 4, v12")
    a("v_lshlrev_b32 v11, 13, v11")
    a(f"v_add_u32 v{vdW}, v11, v12")
    a("s_lshl_b32 s33, s26, 8")
    a("s_lshl_b32 s34, s29, 5")
    a("s_add_u32 s33, s33, s34")
    a("s_lshl_b32 s33, s33, 10")
    a("s_lshl_b32 s34, s29, 16")
    a("s_lshl_b32 s35, s27, 8")
    a("s_add_u32 s34, s34, s35")
    a("s_lshl_b32 s35, s29, 12")
    a("s_lshl_b32 s36, s29, 11")
    def dma_groups(S):
        o = (S % 3) * SLOT; ph = S // 8; k = S % 8
        srdw = 16 if ph == 0 else 72
        G = []
        for j in range(4):
            G.append([f"s_add_u32 m0, s35, {o + j*1024}", f"s_add_u32 s37, s33, {k*128 + j*8192}",
                      f"buffer_load_dwordx4 v{vdA[j%2]}, s[12:15], s37 offen lds"])
        for j in range(2):
            G.append([f"s_add_u32 m0, s36, {o + 32768 + j*1024}", f"s_add_u32 s37, s34, {(k*64 + 4*j)*8192}",
                      f"buffer_load_dwordx4 v{vdW}, s[{srdw}:{srdw+3}], s37 offen lds"])
        return G
    ops = []
    for S in range(3):
        for g in dma_groups(S):
            for x in g: a(x)
        ops += [S] * 6
    a("v_lshlrev_b32 v1, 4, v0")
    a("s_lshl_b32 s56, s25, 3")
    a("s_add_u32 s56, s56, s29")
    a("s_lshl_b32 s57, s56, 14")
    a("s_lshl_b32 s58, s24, 8")
    a("s_add_u32 s57, s57, s58")
    a("s_add_u32 s58, s57, 8192")
    def warm0():
        a("buffer_load_dwordx4 v[20:23], v1, s[16:19], s57 offen")
        a("buffer_load_dwordx4 v[20:23], v1, s[16:19], s58 offen")
        a("s_lshl_b32 s59, s24, 3")
        a("s_add_u32 s59, s59, s56")
        a("s_and_b32 s59, s59, 255")
        a("s_lshl_b32 s59, s59, 13")
        for j in range(8):
            if j == 4: a("s_add_u32 s59, s59, 4096")
            a(f"buffer_load_dwordx4 v[20:23], v1, s[12:15], s59 offen offset:{(j%4)*1024}")
        ops.extend(["warm"] * 10)
    WVS = int(os.environ.get("WVS", "0"))
    def warm_groups(S):
        if S == WVS: return [["buffer_load_dwordx4 v[20:23], v1, s[72:75], s57 offen"], ["buffer_load_dwordx4 v[20:23], v1, s[72:75], s58 offen"]]
        return []
    Lsj = a.newlabel("sj")
    a("v_mov_b32 v57, 0")
    a("v_mov_b32 v58, 0")
    a("s_lshl_b32 s40, s2, 3")
    a("s_add_u32 s40, s40, s29")
    a("s_cmp_ge_u32 s40, 162")
    a(f"s_cbranch_scc1 {Lsj}")
    a("s_load_dwordx4 s[44:47], s[0:1], 16")
    a("s_cmp_ge_u32 s40, 81")
    a("s_cselect_b32 s41, 81, 0")
    a("s_sub_u32 s40, s40, s41")
    a("s_lshl_b32 s42, s40, 6")
    a("v_add_u32 v56, s42, v0")
    a("s_mov_b32 s42, 7282")
    a("v_mul_lo_u32 v57, v56, s42")
    a("v_lshrrev_b32 v57, 16, v57")
    a("v_mul_u32_u24 v58, 9, v57")
    a("v_sub_u32 v58, v56, v58")
    a("v_lshlrev_b32 v57, 7, v57")
    a("v_lshl_add_u32 v57, v58, 2, v57")
    a("v_lshlrev_b32 v56, 2, v56")
    a("s_waitcnt lgkmcnt(0)")
    a("s_cmp_eq_u32 s41, 0")
    a("s_cselect_b32 s48, s44, s46")
    a("s_cselect_b32 s49, s45, s47")
    a(f"s_mov_b32 s50, {SZ['A_wk']}")
    a("s_mov_b32 s51, 0x00020000")
    a("s_cselect_b32 s41, 0, 64")
    a("v_add_u32 v57, s41, v57")
    a("buffer_load_dword v58, v56, s[48:51], 0 offen")
    a.label(Lsj)
    PFS = []
    if not os.environ.get("NOPF"):
        for (p, nm) in ((62, "B_x"), (64, "B_wq")):
            for u0 in range(0, SZ[nm] // 1024, 2048): PFS.append((p, nm, u0))
        a("s_load_dwordx2 s[62:63], s[0:1], 40")
        a("s_load_dwordx2 s[64:65], s[0:1], 56")
        a("s_lshl_b32 s40, s2, 3")
        a("s_add_u32 s40, s40, s29")
        a("s_lshl_b32 s40, s40, 10")
        a("s_waitcnt lgkmcnt(0)")
    a("v_lshlrev_b32 v1, 4, v0")
    def prefetch_group(k):
        p, nm, u0 = PFS[k]
        return [f"s_mov_b32 s68, s{p}", f"s_mov_b32 s69, s{p+1}", f"s_mov_b32 s70, {SZ[nm]}", "s_mov_b32 s71, 0x00020000",
                f"s_add_u32 s41, s40, {u0*1024}", "buffer_load_dwordx4 v[20:23], v1, s[68:71], s41 offen"]
    a("s_lshr_b32 s31, s29, 1")
    a("s_and_b32 s32, s29, 1")
    bA, bW = 5, 6
    rA = [8, 9, 10, 11]; rW = [12, 13]
    a("v_and_b32 v14, 31, v0")
    a("v_lshrrev_b32 v15, 1, v14")
    a("v_and_b32 v15, 7, v15")
    a("v_lshrrev_b32 v16, 5, v0")
    a("v_xor_b32 v15, v15, v16")
    a("v_lshlrev_b32 v15, 4, v15")
    a("s_lshl_b32 s38, s31, 6")
    a("v_add_u32 v14, s38, v14")
    a("v_lshlrev_b32 v14, 7, v14")
    a(f"v_add_u32 v{bA}, v14, v15")
    a("v_lshrrev_b32 v14, 2, v0")
    a("v_and_b32 v14, 3, v14")
    a("v_lshrrev_b32 v15, 5, v0")
    a("v_lshl_add_u32 v15, v15, 3, v14")
    a("v_lshlrev_b32 v15, 8, v15")
    a("v_lshrrev_b32 v16, 4, v0")
    a("v_and_b32 v16, 1, v16")
    a("v_lshlrev_b32 v16, 5, v16")
    a("v_and_b32 v17, 3, v0")
    a("v_lshlrev_b32 v17, 3, v17")
    a("v_add3_u32 v15, v15, v16, v17")
    a("s_lshl_b32 s38, s32, 1")
    a("v_xor_b32 v14, s38, v14")
    a("v_lshlrev_b32 v14, 6, v14")
    a(f"v_add_u32 v{bW}, v15, v14")
    def addr(S):
        o = (S % 3) * SLOT
        L = [f"v_add_u32 v{rA[0]}, {o}, v{bA}", f"v_add_u32 v{rW[0]}, {o+32768}, v{bW}"]
        L += [f"v_xor_b32 v{rA[k]}, {k*32}, v{rA[0]}" for k in range(1, 4)]
        L += [f"v_xor_b32 v{rW[1]}, 64, v{rW[0]}"]
        return L
    ACC = [64, 128]
    sets = [dict(act=24, w=32), dict(act=40, w=48)]
    def reads(ks, st):
        act = [f"ds_read_b128 {vr(st['act']+4*tt,4)}, v{rA[ks]} offset:{tt*4096}" for tt in range(2)]
        w = [[f"ds_read_b64_tr_b16 {vr(st['w']+4*ct+2*rd,2)}, v{rW[ct]} offset:{ks*4096+rd*1024}" for rd in range(2)] for ct in range(2)]
        return [act[0]] + w[0] + w[1] + [act[1]]
    a("s_lshl_b32 s38, s27, 19")
    a("s_lshl_b32 s39, s26, 3")
    a("s_lshl_b32 s42, s31, 1")
    a("s_add_u32 s39, s39, s42")
    a("s_lshl_b32 s39, s39, 13")
    a("s_add_u32 s38, s38, s39")
    a("s_lshl_b32 s39, s32, 12")
    a("s_add_u32 s43, s38, s39")
    a("s_lshl_b32 s39, s32, 11")
    a("s_add_u32 s44, s38, s39")
    import math, struct
    a(f"s_mov_b32 s46, 0x{struct.unpack('<I', struct.pack('<f', math.log2(math.e) / math.sqrt(128.0)))[0]:08x}")
    def epi_groups(ph):
        G = []; t = 0
        for tt in range(2):
            for ct in range(2):
                for hf in range(2):
                    base = ACC[ph] + 16*(2*tt+ct) + 8*hf
                    tmp = 192 + 4*(t % 8); t += 1
                    g = [f"v_mul_f32 v{base+j}, s46, v{base+j}" for j in range(8)] if ph == 0 else []
                    g += [f"v_cvt_pk_bf16_f32 v{tmp+j}, v{base+2*j}, v{base+2*j+1}" for j in range(4)]
                    if ph: so = tt*8192 + hf*4096; imm = ct*1024; sb = 44; srd = 76
                    else:  so = tt*8192; imm = ct*2048 + hf*1024; sb = 43; srd = 20
                    g += [f"s_add_u32 s45, s{sb}, {so}", f"buffer_store_dwordx4 {vr(tmp,4)}, v1, s[{srd}:{srd+3}], s45 offen offset:{imm} {os.environ.get('STF', '')}"]
                    if os.environ.get("NOST"): g = [x for x in g if not x.startswith("buffer_store")]
                    G.append(g)
        return G
    def quad(st, ph, first, fillers):
        need = [3, 5, 6, 6]
        F = list(fillers); issued_after = 0; k = 0
        for tt in range(2):
            for ct in range(2):
                if k == 0 or need[k] != need[k-1]:
                    a(f"s_waitcnt lgkmcnt({min(15, 6 - need[k] + issued_after)})")
                acc = vr(ACC[ph] + 16*(2*tt+ct), 16)
                C = "0" if first else acc
                A_ = vr(st['act']+4*tt, 4); W_ = vr(st['w']+4*ct, 4)
                if ph: a(f"v_mfma_f32_32x32x16_bf16 {acc}, {A_}, {W_}, {C}")
                else:  a(f"v_mfma_f32_32x32x16_bf16 {acc}, {W_}, {A_}, {C}")
                n = (len(F) + (3 - k)) // (4 - k)
                for _ in range(n):
                    for x in F.pop(0):
                        a(x)
                        if x.startswith("ds_read"): issued_after += 1
                k += 1
    pairs = lambda L: [[x, y] for x, y in zip(L[0::2], L[1::2])]
    for x in addr(0): a(x)
    if not os.environ.get("WARMLATE"): warm0()
    a(f"s_waitcnt vmcnt({len(ops) - 6})")
    a("s_barrier")
    if os.environ.get("WARMLATE"): warm0()
    stamp(a, 1)
    for x in reads(0, sets[0]): a(x)
    pend = []
    pfk = 0
    for S in range(NS):
        ph = S // 8
        for ks in range(4):
            cur = sets[ks % 2]; nxt = sets[(ks + 1) % 2]
            F = []
            if ks < 3:
                F += pairs(reads(ks + 1, nxt))
                n = (len(pend) + (2 - ks)) // (3 - ks)
                for g, tag in pend[:n]:
                    F.append(g); ops += [tag] * sum(1 for x in g if x.startswith("buffer_"))
                pend = pend[n:]
                quad(cur, ph, S % 8 == 0 and ks == 0, F)
            else:
                if S + 1 < NS:
                    last = max(i for i, o in enumerate(ops) if o == S + 1)
                    a(f"s_waitcnt vmcnt({len(ops) - 1 - last}) lgkmcnt(0)")
                    a("s_barrier")
                    for x in addr(S + 1): a(x)
                    F += pairs(reads(0, nxt))
                    if S + 3 < NS: pend += [(g, S + 3) for g in dma_groups(S + 3)]
                    pend += [(g, "warm") for g in warm_groups(S)]
                    if S >= int(os.environ.get("PFS0", "2")) and pfk < len(PFS): pend.append((prefetch_group(pfk), "pf")); pfk += 1
                    if S in (8, 9, 10, 11): pend += [(g, "st") for g in epi_groups(0)[2*(S-8):2*(S-8)+2]]
                quad(cur, ph, False, F)
    a("s_nop 15")
    stamp(a, 2)
    for g in epi_groups(1):
        for x in g: a(x)
    Lsj2 = a.newlabel("sj2")
    a("s_lshl_b32 s40, s2, 3")
    a("s_add_u32 s40, s40, s29")
    a("s_cmp_ge_u32 s40, 162")
    a(f"s_cbranch_scc1 {Lsj2}")
    make_srd(a, 52, 6, 576*128, WS_WKV)
    a("buffer_store_dword v58, v57, s[52:55], 0 offen")
    a.label(Lsj2)
    stamp(a, 3)
    stamp_flush(a, 4, 6, 29, 8)

def gen_k1(a):
    name = "k1_kernel"
    kernel_header(a, name)
    L_end = "L_k1_end"
    a("s_cmp_ge_u32 s2, 256")
    a(f"s_cbranch_scc1 {L_end}")
    gen_k1_main(a, L_end)
    a.label(L_end)
    a("s_endpgm")
    return name, kernel_desc(name, 224, 0), "grid=(256,1,1) block=(512,1,1) lds=147456"
```

```python
from common import *
import math, struct, os
import g576

def f32bits(x):
    return struct.unpack("<I", struct.pack("<f", x))[0]

TOFF = 40.0
LTHRESH = 2.0**80
NEGBIG = -1.0e30

EPI = []
STEAL = []
def gen_k2b_body(a, L_end):
    NQ = 18
    def stamp(a, idx):
        if PROF:
            a("s_memtime s[52:53]")
            a("s_waitcnt lgkmcnt(0)")
            a("v_mov_b32 v22, s52")
            a(f"v_accvgpr_write_b32 a{224+idx}, v22")
            if idx in (0, 4):
                a("s_memrealtime s[52:53]")
                a("s_waitcnt lgkmcnt(0)")
                a("v_mov_b32 v22, s52")
                a(f"v_accvgpr_write_b32 a{230 + (idx == 4)}, v22")
    def stamp_flush(a, n, wsptr, wave_sreg, nwaves, vtmp=22):
        if not PROF: return
        a("s_waitcnt vmcnt(0)")
        stamp(a, n)
        make_srd(a, 80, wsptr, 16*MB, WS_PROF)
        a(f"s_mul_i32 s84, s2, {nwaves}")
        a(f"s_add_u32 s84, s84, s{wave_sreg}")
        a("s_lshl_b32 s84, s84, 6")
        a("v_mov_b32 v22, 0")
        a("v_accvgpr_read_b32 v24, a224")
        for i in range(n+1):
            a(f"v_accvgpr_read_b32 v23, a{224+i}")
            if i: a("v_sub_u32 v23, v23, v24")
            a(f"buffer_store_dword v23, v22, s[80:83], s84 offen offset:{4*i}")
        a("v_accvgpr_read_b32 v23, a231")
        a("v_accvgpr_read_b32 v24, a230")
        a("v_sub_u32 v23, v23, v24")
        a(f"buffer_store_dword v23, v22, s[80:83], s84 offen offset:{4*(n+1)}")
        a(f"buffer_store_dword v23, v22, s[80:83], s84 offen offset:60")
        a(f"buffer_store_dword v24, v22, s[80:83], s84 offen offset:56")
        a("s_waitcnt vmcnt(0)")
    def ds(k):
        if not os.environ.get("DS"): return
        a("s_memrealtime s[94:95]")
        a("s_waitcnt lgkmcnt(0)")
        make_srd(a, 96, 6, 16*MB, WS_PROF)
        a("s_lshl_b32 s100, s2, 2")
        a("s_add_u32 s100, s100, s34")
        a("s_lshl_b32 s100, s100, 6")
        a("v_mov_b32 v22, 0")
        a("v_mov_b32 v23, s94")
        a(f"buffer_store_dword v23, v22, s[96:99], s100 offen offset:{4*k}")
    S_HEAD, S_I, S_W = 32, 33, 34
    S_AOFF, S_WOFF, S_LDSW = 35, 36, 37
    S_T0, S_T1, S_T2 = 38, 39, 40
    S_KVOFF = 41
    S_KVLDS = 42
    S_KT = 43
    S_ND = 44
    S_NT = 45
    S_TLO, S_THI = 46, 47
    S_DLO, S_DHI = 48, 49
    S_BUF = 50
    S_RETRY = 51
    S_LDSW2 = 54
    S_DM1 = [55, 93]
    S_MASK = 56
    a("s_load_dwordx2 s[4:5], s[0:1], 40")
    a("s_load_dwordx2 s[8:9], s[0:1], 56")
    a("s_load_dwordx2 s[6:7], s[0:1], 104")
    a("s_and_b32 s38, s2, 7")
    a("s_lshr_b32 s39, s2, 3")
    a(f"s_and_b32 s{S_I}, s39, 7")
    a("s_lshr_b32 s39, s39, 3")
    a("s_lshl_b32 s38, s38, 2")
    a(f"s_add_u32 s{S_HEAD}, s38, s39")
    a("v_lshrrev_b32 v1, 6, v0")
    a("v_and_b32 v0, 63, v0")
    a(f"v_readfirstlane_b32 s{S_W}, v1")
    a("v_lshlrev_b32 v1, 4, v0")
    a("s_load_dwordx2 s[56:57], s[0:1], 48")
    a("s_load_dwordx4 s[60:63], s[0:1], 64")
    a("s_load_dwordx2 s[68:69], s[0:1], 96")
    a("s_load_dwordx4 s[84:87], s[0:1], 16")
    a("s_waitcnt lgkmcnt(0)")
    stamp(a, 0)
    make_srd(a, 12, 4, SZ["B_x"])
    make_srd(a, 16, 8, SZ["B_wq"])
    a(f"s_lshl_b32 s38, s{S_HEAD}, 19")
    for (d, off) in ((20, WS_KB), (24, WS_VB)):
        a(f"s_add_u32 s39, s38, {off}")
        a(f"s_add_u32 s{d}, s6, s39")
        a(f"s_addc_u32 s{d+1}, s7, 0")
        a(f"s_mov_b32 s{d+2}, 524288")
        a(f"s_mov_b32 s{d+3}, 0x00020000")
    make_srd(a, 28, 6, 16*MB, WS_CTX)
    a(f"s_mov_b32 s58, {SZ['B_ckv']}")
    a("s_mov_b32 s59, 0x00020000")
    a("s_mov_b32 s64, s62")
    a("s_mov_b32 s65, s63")
    a(f"s_mov_b32 s62, {SZ['B_wuk']}")
    a("s_mov_b32 s63, 0x00020000")
    a(f"s_mov_b32 s66, {SZ['B_wuv']}")
    a("s_mov_b32 s67, 0x00020000")
    a("s_mov_b32 s70, 256")
    a("s_mov_b32 s71, 0x00020000")
    S_COFF, S_OB, S_SC = 72, 73, 74
    a(f"s_mov_b32 s{S_SC}, 0x{f32bits(math.log2(math.e) / math.sqrt(128.0)):08x}")
    Lz = a.newlabel("z")
    a(f"s_or_b32 s38, s2, s{S_W}")
    a("s_cmp_lg_u32 s38, 0")
    a(f"s_cbranch_scc1 {Lz}")
    make_srd(a, 88, 6, 8192, WS_FLAG)
    a("v_lshlrev_b32 v22, 7, v0")
    a("v_mov_b32 v23, 0")
    a("buffer_store_dword v23, v22, s[88:91], 0 offen")
    a.label(Lz)
    a("s_load_dwordx4 s[96:99], s[0:1], 0")
    a("s_load_dwordx2 s[100:101], s[0:1], 32")
    a("s_load_dwordx2 s[94:95], s[0:1], 80")
    a("s_lshl_b32 s38, s2, 2")
    a(f"s_add_u32 s38, s38, s{S_W}")
    a("s_waitcnt lgkmcnt(0)")
    a("s_mov_b32 s88, s94")
    a("s_mov_b32 s89, s95")
    a("s_mov_b32 s39, s38")
    for lim, p in ((512, 96), (768, 98), (840, 100)):
        a(f"s_cmp_ge_u32 s38, {lim}")
        a(f"s_cselect_b32 s88, s{p}, s88")
        a(f"s_cselect_b32 s89, s{p+1}, s89")
        a(f"s_sub_u32 s40, s38, {lim}")
        a(f"s_cmp_ge_u32 s38, {lim}")
        a("s_cselect_b32 s39, s40, s39")
    a("s_mul_i32 s92, s39, 9216")
    a("s_add_u32 s90, s92, 9216")
    a("s_cmp_ge_u32 s38, 912")
    a("s_cselect_b32 s90, 0, s90")
    a("s_mov_b32 s91, 0x00020000")
    a(f"s_lshl_b32 s{S_DLO}, s{S_I}, 2")
    a(f"s_add_u32 s{S_ND}, s{S_DLO}, 4")
    a(f"s_sub_u32 s{S_DHI}, 60, s{S_DLO}")
    a(f"s_add_u32 s{S_NT}, s{S_DHI}, 4")
    a(f"s_add_u32 s{S_TLO}, s{S_DLO}, s{S_W}")
    a(f"s_add_u32 s{S_THI}, s{S_DHI}, s{S_W}")
    a(f"s_mov_b32 s{S_RETRY}, {1 if os.environ.get('EXPF') else 0}")
    NS = 9
    SLOT = 49152
    vdA = [2, 3]; vdW = 4
    a("s_movk_i32 s38, 1152")
    a("v_lshrrev_b32 v22, 3, v0")
    a("v_mul_lo_u32 v22, v22, s38")
    a("v_lshrrev_b32 v23, 4, v0")
    a("v_and_b32 v24, 7, v0")
    a("v_xor_b32 v25, v23, v24")
    a(f"v_lshl_add_u32 v{vdA[0]}, v25, 4, v22")
    a(f"v_xor_b32 v{vdA[1]}, 64, v{vdA[0]}")
    a("v_xor_b32 v25, 4, v25")
    a(f"v_lshl_add_u32 v{vdA[1]}, v25, 4, v22")
    a("v_lshlrev_b32 v24, 2, v23")
    a("v_and_b32 v25, 15, v0")
    a("v_xor_b32 v24, v24, v25")
    a("v_lshlrev_b32 v24, 4, v24")
    a("v_lshlrev_b32 v23, 13, v23")
    a(f"v_add_u32 v{vdW}, v23, v24")
    a(f"s_lshl_b32 s38, s{S_DLO}, 5")
    a(f"s_lshl_b32 s39, s{S_DHI}, 5")
    a("s_sub_u32 s39, s39, 128")
    a(f"s_cmp_lt_u32 s{S_W}, 2")
    a("s_cselect_b32 s38, s38, s39")
    a(f"s_lshl_b32 s39, s{S_W}, 6")
    a("s_add_u32 s38, s38, s39")
    a(f"s_mul_i32 s{S_AOFF}, s38, 1152")
    a(f"s_lshl_b32 s38, s{S_W}, 17")
    a(f"s_lshl_b32 s39, s{S_HEAD}, 8")
    a(f"s_add_u32 s{S_WOFF}, s38, s39")
    a(f"s_lshl_b32 s{S_LDSW}, s{S_W}, 12")
    a(f"s_lshl_b32 s{S_LDSW2}, s{S_W}, 13")
    bA, bW = 5, 6
    rA = [8, 9, 10, 11]; rW = [12, 13, 14, 15]
    a("v_and_b32 v22, 31, v0")
    a("v_lshrrev_b32 v23, 1, v22")
    a("v_and_b32 v23, 7, v23")
    a("v_lshrrev_b32 v24, 5, v0")
    a("v_xor_b32 v23, v23, v24")
    a("v_lshlrev_b32 v23, 4, v23")
    a(f"s_lshl_b32 s38, s{S_W}, 5")
    a("v_add_u32 v22, s38, v22")
    a("v_lshlrev_b32 v22, 7, v22")
    a(f"v_add_u32 v{bA}, v22, v23")
    a("v_lshrrev_b32 v22, 2, v0")
    a("v_and_b32 v22, 3, v22")
    a("v_lshrrev_b32 v23, 5, v0")
    a("v_lshl_add_u32 v23, v23, 3, v22")
    a("v_lshlrev_b32 v23, 8, v23")
    a("v_lshrrev_b32 v24, 4, v0")
    a("v_and_b32 v24, 1, v24")
    a("v_lshlrev_b32 v24, 5, v24")
    a("v_and_b32 v25, 3, v0")
    a("v_lshlrev_b32 v25, 3, v25")
    a("v_add3_u32 v23, v23, v24, v25")
    a("v_lshlrev_b32 v22, 6, v22")
    a(f"v_add_u32 v{bW}, v23, v22")
    O = 128
    qs = [dict(act=32, w=40), dict(act=56, w=64)]
    def q_addr(S):
        o = (S % 3) * SLOT
        L = [f"v_add_u32 v{rA[0]}, {o}, v{bA}", f"v_add_u32 v{rW[0]}, {o+32768}, v{bW}"]
        L += [f"v_xor_b32 v{rA[k]}, {k*32}, v{rA[0]}" for k in range(1, 4)]
        L += [f"v_xor_b32 v{rW[k]}, {k*64}, v{rW[0]}" for k in range(1, 4)]
        return L
    vdC = [26, 27]
    a("v_lshrrev_b32 v22, 3, v0")
    a("v_lshlrev_b32 v22, 10, v22")
    a("v_lshrrev_b32 v23, 4, v0")
    a("v_and_b32 v24, 7, v0")
    a("v_xor_b32 v25, v23, v24")
    a(f"v_lshl_add_u32 v{vdC[0]}, v25, 4, v22")
    a("v_xor_b32 v25, 4, v25")
    a(f"v_lshl_add_u32 v{vdC[1]}, v25, 4, v22")
    a(f"s_lshl_b32 s38, s{S_I}, 8")
    a(f"s_lshl_b32 s39, s{S_W}, 6")
    a("s_add_u32 s38, s38, s39")
    a(f"s_lshl_b32 s{S_COFF}, s38, 10")
    a(f"s_lshl_b32 s38, s{S_I}, 3")
    a(f"s_add_u32 s38, s38, s{S_W}")
    a(f"s_lshl_b32 s{S_OB}, s38, 13")
    PH0 = [0, 8, 16]; NG = 25
    def phase_of(G): return 0 if G < 8 else (1 if G < 16 else 2)
    def dma_q_groups(G, slot=None, sC=S_COFF, sW=S_WOFF, dynS=None):
        p = phase_of(G); S = G - PH0[p]
        o = ((G % 3) if slot is None else slot) * SLOT
        Gs = []
        for j in range(8):
            if p == 2:
                Gs.append([f"s_add_u32 m0, s{S_LDSW2}, {o + j*1024}", f"s_add_u32 s{S_T0}, s{S_AOFF}, {S*128 + j*8*1152}",
                           f"buffer_load_dwordx4 v{vdA[j%2]}, s[12:15], s{S_T0} offen lds"])
            else:
                Gs.append([f"s_add_u32 m0, s{S_LDSW2}, {o + j*1024}", f"s_add_u32 s{S_T0}, s{sC}, {S*128 + j*8192}",
                           f"buffer_load_dwordx4 v{vdC[j%2]}, s[56:59], s{S_T0} offen lds"])
        srdw = (60, 64, 16)[p]
        for j in range(4):
            Gs.append([f"s_add_u32 m0, s{S_LDSW}, {o + 32768 + j*1024}", f"s_add_u32 s{S_T0}, s{sW}, {(S*64 + 4*j)*8192}",
                       f"buffer_load_dwordx4 v{vdW}, s[{srdw}:{srdw+3}], s{S_T0} offen lds"])
        return Gs
    def accreg(p, X, dt, base=None):
        if p != 1 and base is None: return vr(O + 16*(4*X+dt), 16)
        return ar((0 if base is None else base) + 16*(4*X+dt), 16)
    WB = False
    def kv_epi_groups(p, srd, sOB, base=None, sc=None):
        sc = ("" if os.environ.get("NOSC") else " sc1") if sc is None else sc
        Gs = []; t = 0
        for X in range(2):
            for dt in range(4):
                for hf in range(2):
                    ab = (0 if base is None else base) + 16*(4*X+dt) + 8*hf
                    tv = 80 + 8*(t % 2); tp = 96 + 4*(t % 4); t += 1
                    g1 = [f"v_accvgpr_read_b32 v{tv+j}, a{ab+j}" for j in range(8)]
                    if p == 0 and base is None: g1 = []; tv = O + ab
                    g2 = [f"v_mul_f32 v{tv+j}, s{S_SC}, v{tv+j}" for j in range(8)] if p == 0 else []
                    g3 = [f"v_cvt_pk_bf16_f32 v{tp+j}, v{tv+2*j}, v{tv+2*j+1}" for j in range(4)]
                    off = X*32768 + ((2*dt+hf)*1024 if p == 0 else hf*4096 + dt*1024)
                    g3 += [f"s_add_u32 s{S_T1}, s{sOB}, {off & ~4095}",
                           f"buffer_store_dwordx4 {vr(tp,4)}, v1, s[{srd}:{srd+3}], s{S_T1} offen offset:{off & 4095}{sc}"]
                    Gs += ([g1[:4], g1[4:]] if g1 else []) + ([g2[:4], g2[4:]] if g2 else []) + [g3]
        return Gs
    def pad_load(s_task):
        L = a.newlabel("pl")
        a("v_mov_b32 v125, 0x7fffffff")
        a(f"s_lshl_b32 s75, s{s_task}, 2")
        a(f"s_add_u32 s75, s75, s{S_W}")
        a("s_cmp_ge_u32 s75, 162")
        a(f"s_cbranch_scc1 {L}")
        a("s_cmp_ge_u32 s75, 81")
        a("s_cselect_b32 s76, 81, 0")
        a("s_cselect_b32 s80, s86, s84")
        a("s_cselect_b32 s81, s87, s85")
        a("s_cselect_b32 s77, 64, 0")
        a(f"s_mov_b32 s82, {SZ['A_wk']}")
        a("s_mov_b32 s83, 0x00020000")
        a("s_sub_u32 s75, s75, s76")
        a("s_lshl_b32 s75, s75, 6")
        a("v_add_u32 v126, s75, v0")
        a("s_mov_b32 s75, 7282")
        a("v_mul_lo_u32 v125, v126, s75")
        a("v_lshrrev_b32 v125, 16, v125")
        a("v_mul_u32_u24 v127, 9, v125")
        a("v_sub_u32 v127, v126, v127")
        a("v_lshlrev_b32 v125, 7, v125")
        a("v_lshl_add_u32 v125, v127, 2, v125")
        a("v_add_u32 v125, s77, v125")
        a("v_lshlrev_b32 v126, 2, v126")
        a("buffer_load_dword v124, v126, s[80:83], 0 offen")
        a.label(L)
    def pad_store():
        return [f"s_add_u32 s80, s6, {WS_WKV}", "s_addc_u32 s81, s7, 0", f"s_mov_b32 s82, {576*128}", "s_mov_b32 s83, 0x00020000",
                "buffer_store_dword v124, v125, s[80:83], 0 offen sc1"]
    def flag_or(s_head, s_bit_shift_base, s_tb, own=False):
        L = a.newlabel("fo")
        if own and os.environ.get("DROPK"):
            a("s_cmp_eq_u32 s22, 0")
            a(f"s_cbranch_scc1 {L}")
        a(f"s_cmp_lg_u32 s{S_W}, 0")
        a(f"s_cbranch_scc1 {L}")
        a(f"s_lshl_b32 s75, {1 << s_bit_shift_base}, s{s_tb}")
        a(f"s_lshl_b32 s76, s{s_head}, 2")
        a("v_mov_b32 v22, s75")
        a("v_mov_b32 v23, 0")
        a("s_mov_b64 exec, 1")
        a("buffer_atomic_or v22, v23, s[68:71], s76 offen")
        a("s_mov_b64 exec, -1")
        a.label(L)

    def dma_kv_instrs(pf=1):
        g = []
        for part in range(2):
            for j in range(4):
                ins = []
                if j == 0:
                    ins.append(f"s_add_u32 m0, s{S_KVLDS}, {part*16384}")
                    ins.append("s_nop 0")
                ins.append(f"buffer_load_dwordx4 v1, s[{20+4*part}:{23+4*part}], s{S_KVOFF} offen offset:{j*1024} lds")
                g.append(ins)
        g.append([f"s_add_u32 s{S_KVOFF}, s{S_KVOFF}, 16384", f"s_add_u32 s{S_KVLDS}, s{S_KVLDS}, 32768"])
        g.append([f"s_cmp_ge_u32 s{S_KVLDS}, 163840", f"s_cselect_b32 s{S_KVLDS}, s{S_LDSW}, s{S_KVLDS}"])
        for _ in range(pf):
            g.append(["buffer_load_dwordx4 v[28:31], v1, s[88:91], s92 offen", "s_add_u32 s92, s92, 1024"])
        return g

    def kv_init(firstbuf):
        a(f"s_mov_b32 s{S_KVOFF}, s{S_LDSW}")
        a(f"s_add_u32 s{S_KVLDS}, s{S_LDSW}, {firstbuf*32768}")

    def q_reads(ks, st):
        act = [f"ds_read_b128 {vr(st['act']+4*X,4)}, v{rA[ks]} offset:{X*16384}" for X in range(2)]
        w = [[f"ds_read_b64_tr_b16 {vr(st['w']+4*dt+2*rd,2)}, v{rW[dt]} offset:{ks*4096+rd*1024}" for rd in range(2)] for dt in range(4)]
        return [act[0]] + w[0] + [act[1]] + w[1] + w[2] + w[3]

    def q_half(st, first, fillers, p=2, base=None):
        need = [3, 4, 6, 6, 8, 8, 10, 10]
        F = list(fillers)
        issued_after = 0
        k = 0
        for dt in range(4):
            for X in range(2):
                if k == 0 or need[k] != need[k-1]:
                    a(f"s_waitcnt lgkmcnt({min(15, 10 - need[k] + issued_after)})")
                acc = accreg(p, X, dt, base)
                C = "0" if first else acc
                if p == 1: a(f"v_mfma_f32_32x32x16_bf16 {acc}, {vr(st['act']+4*X,4)}, {vr(st['w']+4*dt,4)}, {C}")
                else: a(f"v_mfma_f32_32x32x16_bf16 {acc}, {vr(st['w']+4*dt,4)}, {vr(st['act']+4*X,4)}, {C}")
                n = (len(F) + (7 - k)) // (8 - k)
                for _ in range(n):
                    g = F.pop(0)
                    for x in g:
                        a(x)
                        if x.startswith("ds_read"): issued_after += 1
                k += 1
    pairs = lambda L: [[x, y] for x, y in zip(L[0::2], L[1::2])]

    FIRSTBUF = 2
    kv_init(FIRSTBUF)
    DROPK = os.environ.get("DROPK")
    if DROPK:
        a(f"s_and_b32 s38, s2, {DROPK}")
        a("s_cmp_eq_u32 s38, 0")
        a("s_cselect_b32 s22, 0, s22")
        a("s_cselect_b32 s26, 0, s26")
    ds(0)
    flag_or(S_HEAD, 0, S_I, own=True)
    ops = []
    for G in range(3):
        for g in dma_q_groups(G):
            for x in g: a(x)
        ops += [G] * 12
    pad_load(2)
    a("s_lshr_b32 s75, s2, 3")
    a("s_lshl_b32 s75, s75, 2")
    a(f"s_add_u32 s75, s75, s{S_W}")
    a("s_and_b32 s76, s2, 7")
    a("s_lshl_b32 s77, s75, 15")
    a("s_lshl_b32 s78, s76, 10")
    a("s_add_u32 s77, s77, s78")
    for j in range(4):
        a(f"s_add_u32 s78, s77, {j*8192}")
        a("buffer_load_dwordx4 v[28:31], v1, s[60:63], s78 offen")
    a("s_lshl_b32 s78, s76, 4")
    a("s_add_u32 s78, s78, s75")
    a("s_and_b32 s78, s78, 127")
    a("s_lshl_b32 s78, s78, 14")
    for j in range(16):
        if j and j % 4 == 0: a("s_add_u32 s78, s78, 4096")
        a(f"buffer_load_dwordx4 v[28:31], v1, s[56:59], s78 offen offset:{(j%4)*1024}")
    ops += ["warm"] * 20
    a("s_lshl_b32 s79, s2, 2")
    a(f"s_add_u32 s79, s79, s{S_W}")
    a("s_lshl_b32 s79, s79, 10")
    def warm_groups(G):
        if G == 0: return [[f"s_add_u32 s78, s77, {j*8192}", "buffer_load_dwordx4 v[28:31], v1, s[64:67], s78 offen"] for j in range(4)]
        if os.environ.get("NOPF2"): return []
        if 2 <= G < 5: return [[f"s_add_u32 s78, s79, {(G-2)*1024*1024}", "buffer_load_dwordx4 v[28:31], v1, s[12:15], s78 offen"]]
        if 5 <= G < 10: return [[f"s_add_u32 s78, s79, {(G-5)*1024*1024}", "buffer_load_dwordx4 v[28:31], v1, s[16:19], s78 offen"]]
        return []
    for x in q_addr(0): a(x)
    a(f"s_waitcnt vmcnt({len(ops) - 12})")
    a("s_barrier")
    ds(1)
    for x in q_reads(0, qs[0]): a(x)
    pend = []
    nvm = lambda g: sum(1 for x in g if x.startswith("buffer_"))
    epi = {0: kv_epi_groups(0, 20, S_OB), 1: kv_epi_groups(1, 24, S_OB)}
    NV = int(os.environ.get("NV", "3")); GSIG = 17 + NV
    def superstage(G, pend, extra24=None):
        p = phase_of(G)
        for ks in range(4):
            cur = qs[ks % 2]; nxt = qs[(ks + 1) % 2]
            F = []
            if ks < 3:
                F += pairs(q_reads(ks + 1, nxt))
                n = (len(pend) + (2 - ks)) // (3 - ks)
                for g, tag in pend[:n]:
                    F.append(g); ops.extend([tag] * nvm(g))
                pend = pend[n:]
                q_half(cur, G == PH0[p] and ks == 0, F, p)
            else:
                if G + 1 < NG:
                    last = max(i for i, o in enumerate(ops) if o == G + 1)
                    if G == GSIG: last = max(last, max(i for i, o in enumerate(ops) if o == "st"))
                    if G == NG - 2: last = len(ops) - 1
                    a(f"s_waitcnt vmcnt({len(ops) - 1 - last}) lgkmcnt(0)")
                    a("s_barrier")
                    if G == GSIG: flag_or(S_HEAD, 8, S_I, own=True)
                    if G == 7: ds(2)
                    if G == 15: ds(3)
                    for x in q_addr(G + 1): a(x)
                    F += pairs(q_reads(0, nxt))
                    if G + 3 < NG: pend += [(g, G + 3) for g in dma_q_groups(G + 3)]
                    pend += [(g, "warm") for g in warm_groups(G)]
                    if 8 <= G < 15:
                        k = G - 8; e = epi[0]; pend += [(g, "st") for g in e[k*len(e)//7:(k+1)*len(e)//7]]
                    if G == 12: pend.append((pad_store(), "st"))
                    if 16 <= G < 16 + NV:
                        k = G - 16; e = epi[1]; pend += [(g, "st") for g in e[k*len(e)//NV:(k+1)*len(e)//NV]]
                    if G == NG - 3:
                        pend.append((["v_and_b32 v122, 31, v0", "v_lshlrev_b32 v122, 2, v122", "buffer_load_dword v123, v122, s[68:71], 0 offen sc1"], "fl"))
                    if G == NG - 2:
                        F.append(["v_lshrrev_b32 v123, 8, v123", "v_cmp_ne_u32 vcc, 0xff, v123", "s_or_b32 s93, vcc_lo, vcc_hi"])
                else:
                    a("s_waitcnt lgkmcnt(0)")
                q_half(cur, False, F, p)
        return pend
    for G in range(NG - 1):
        pend = superstage(G, pend)
    if DROPK:
        a("s_mov_b32 s22, 524288")
        a("s_mov_b32 s26, 524288")
    assert not pend
    Lslow, Ljoin = a.newlabel("g24s"), a.newlabel("g24j")
    a("s_cmp_lg_u32 s93, 0")
    a(f"s_cbranch_scc1 {Lslow}")
    superstage(NG - 1, [(g, "kv") for k in range(3) for g in dma_kv_instrs(0)])
    a(f"s_branch {Ljoin}")
    a.label(Lslow)
    superstage(NG - 1, [])
    a.label(Ljoin)
    ds(4)
    a.label("L_k2_wait")
    Lp, Lq, Lsync = a.newlabel("kpoll"), a.newlabel("kgo"), a.newlabel("ksync")
    a("v_mov_b32 v22, 0xf000")
    a(f"s_cmp_lg_u32 s{S_W}, 0")
    a(f"s_cbranch_scc1 {Lsync}")
    a("s_cmp_eq_u32 s93, 0")
    a(f"s_cbranch_scc1 {Lq}")
    a("v_and_b32 v23, 31, v0")
    a("v_lshlrev_b32 v23, 2, v23")
    a.label(Lp)
    a("buffer_load_dword v24, v23, s[68:71], 0 offen sc1")
    a("s_waitcnt vmcnt(0)")
    a("v_lshrrev_b32 v25, 8, v24")
    a("v_cmp_ne_u32 vcc, 0xff, v25")
    a(f"s_cbranch_vccz {Lq}")
    a("v_and_b32 v25, 0xff, v24")
    a("v_cmp_ne_u32 vcc, 0xff, v25")
    a("s_cbranch_vccnz L_k2_steal")
    a(f"s_sleep {os.environ.get('SL2', '24')}")
    a(f"s_branch {Lp}")
    a.label(Lq)
    a("v_mov_b32 v24, -1")
    a.label("L_k2_pub")
    a("ds_write_b32 v22, v24")
    a("s_waitcnt lgkmcnt(0)")
    a.label(Lsync)
    a("s_barrier")
    a("ds_read_b32 v24, v22")
    a("s_waitcnt lgkmcnt(0)")
    a("v_readfirstlane_b32 s79, v24")
    a("s_barrier")
    a("s_cmp_lg_u32 s79, -1")
    a("s_cbranch_scc1 L_k2_runsteal")
    ds(5)
    Lhave = a.newlabel("have")
    a("s_cmp_eq_u32 s93, 0")
    a(f"s_cbranch_scc1 {Lhave}")
    for k in range(3):
        for g in dma_kv_instrs(0):
            for x in g: a(x)
    a.label(Lhave)
    for g in dma_kv_instrs(2):
        for x in g: a(x)
    def steal_code():
        a.label("L_k2_steal")
        a("s_ff1_i32_b64 s75, vcc")
        a("s_nop 3")
        a("v_readlane_b32 s76, v24, s75")
        a("s_and_b32 s75, s75, 31")
        a("s_not_b32 s76, s76")
        a("s_and_b32 s76, s76, 0xff")
        a("s_ff1_i32_b32 s76, s76")
        a("s_lshl_b32 s77, 1, s76")
        a("s_lshl_b32 s78, s75, 2")
        a("v_mov_b32 v24, s77")
        a("v_mov_b32 v25, 0")
        a("s_mov_b64 exec, 1")
        a("buffer_atomic_or v24, v25, s[68:71], s78 offen sc0")
        a("s_waitcnt vmcnt(0)")
        a("s_mov_b64 exec, -1")
        a("v_readfirstlane_b32 s78, v24")
        a("s_and_b32 s78, s78, s77")
        a("s_cmp_lg_u32 s78, 0")
        a(f"s_cbranch_scc1 {Lp}")
        a("s_lshl_b32 s75, s75, 3")
        a("s_add_u32 s75, s75, s76")
        a("v_mov_b32 v24, s75")
        a("s_branch L_k2_pub")
        a.label("L_k2_runsteal")
        a("s_lshr_b32 s94, s79, 3")
        a("s_and_b32 s95, s79, 7")
        a("s_and_b32 s96, s94, 3")
        a("s_lshl_b32 s96, s96, 3")
        a("s_add_u32 s96, s96, s95")
        a("s_lshl_b32 s96, s96, 3")
        a("s_lshr_b32 s97, s94, 2")
        a("s_add_u32 s96, s96, s97")
        pad_load(96)
        a("s_waitcnt vmcnt(0)")
        for x in pad_store(): a(x)
        a("s_lshl_b32 s97, s95, 8")
        a(f"s_lshl_b32 s98, s{S_W}, 6")
        a("s_add_u32 s97, s97, s98")
        a("s_lshl_b32 s97, s97, 10")
        a("s_lshl_b32 s100, s95, 3")
        a(f"s_add_u32 s100, s100, s{S_W}")
        a("s_lshl_b32 s100, s100, 13")
        for p in range(2):
            a(f"s_lshl_b32 s98, s{S_W}, 17")
            a("s_lshl_b32 s99, s94, 8")
            a("s_add_u32 s98, s98, s99")
            a("s_mov_b32 s99, s97")
            a("s_lshl_b32 s75, s94, 19")
            a(f"s_add_u32 s75, s75, {WS_KB if p == 0 else WS_VB}")
            a("s_add_u32 s76, s6, s75")
            a("s_addc_u32 s77, s7, 0")
            a("s_mov_b32 s78, 524288")
            a("s_mov_b32 s79, 0x00020000")
            for i in range(128): a(f"v_accvgpr_write_b32 a{i}, 0")
            for x in q_addr(0): a(x)
            a("s_mov_b32 s101, 8")
            Ll = a.newlabel("sl"); a.label(Ll)
            a("s_barrier")
            for g in dma_q_groups(PH0[p], slot=0, sC=99, sW=98):
                for x in g: a(x)
            a("s_add_u32 s99, s99, 128")
            a(f"s_add_u32 s98, s98, {64*8192}")
            a("s_waitcnt vmcnt(0)")
            a("s_barrier")
            for ks in range(4):
                for x in q_reads(ks, qs[0]): a(x)
                q_half(qs[0], False, [], p, base=0)
            a("s_sub_u32 s101, s101, 1")
            a("s_cmp_lg_u32 s101, 0")
            a(f"s_cbranch_scc1 {Ll}")
            a("s_nop 15")
            for g in kv_epi_groups(p, 76, 100, base=0, sc=" sc1"):
                for x in g: a(x)
        a("s_waitcnt vmcnt(0)")
        a("s_barrier")
        flag_or(94, 8, 95)
        a("s_branch L_k2_wait")
    STEAL.append(steal_code)
    for i in range(16):
        m = 0
        for l in range(64):
            if 8*(i//4) + (i % 4) + 4*(l >> 5) <= (l & 31): m |= 1 << l
        a(f"s_mov_b32 s{S_MASK+2*i}, 0x{m & 0xffffffff:08x}")
        a(f"s_mov_b32 s{S_MASK+2*i+1}, 0x{m >> 32:08x}")
    stamp(a, 2)
    QA = 0; KS = [64, 96]; VS = [128, 160]
    SB = [32, 48]; CI = [64, 80]; PB = [96, 104]
    vL = [18, 19]; vNM = [20, 21]; vRC, vRN = 16, 17
    MSUM = False
    LSUM = bool(os.environ.get("LSUM"))
    LA = [192, 208]; ONEA = 240
    if LSUM:
        a("v_mov_b32 v22, 0x3f803f80")
        for j in range(4): a(f"v_accvgpr_write_b32 a{ONEA+j}, v22")
    def qconv(X):
        L = []
        for dt in range(4):
            for hf in range(2):
                base = O + 16*(4*X+dt) + 8*hf
                g = 2*dt + hf
                t = 112 + 4*(g % 4)
                L += [f"v_cvt_pk_bf16_f32 v{t+j}, v{base+2*j}, v{base+2*j+1}" for j in range(4)]
                L += [f"v_accvgpr_write_b32 a{QA + (8*X+g)*4 + j}, v{t+j}" for j in range(4)]
        return L

    def mask_build(X, kt_sreg, init=True):
        Ld, Lf, Lx = a.newlabel("md"), a.newlabel("mf"), a.newlabel("mx")
        T = S_TLO if X == 0 else S_THI
        a(f"s_cmp_eq_u32 s{kt_sreg}, s{T}")
        a(f"s_cbranch_scc1 {Ld}")
        if init:
            a(f"s_cmp_gt_u32 s{kt_sreg}, s{T}")
            a(f"s_cbranch_scc1 {Lf}")
            for i in range(16): a(f"v_mov_b32 v{CI[X]+i}, v{vNM[X]}")
            a(f"s_branch {Lx}")
        else:
            a(f"s_cmp_eq_u32 s{S_KT}, s{T}")
            a(f"s_cbranch_scc1 {Lf}")
            a(f"s_branch {Lx}")
        a.label(Ld)
        a(f"v_mov_b32 v22, 0x{f32bits(NEGBIG):08x}")
        for i in range(16): a(f"v_cndmask_b32 v{CI[X]+i}, v22, v{vNM[X]}, s[{S_MASK+2*i}:{S_MASK+2*i+1}]")
        a(f"s_branch {Lx}")
        a.label(Lf)
        for i in range(16): a(f"v_mov_b32 v{CI[X]+i}, 0x{f32bits(NEGBIG):08x}")
        a.label(Lx)

    def halfswap_reduce(op, v, t1, t2):
        a(f"v_mov_b32 v{t1}, v{v}")
        a(f"v_mov_b32 v{t2}, v{v}")
        a("s_nop 1")
        a(f"v_permlane32_swap_b32 v{t1}, v{t2}")
        a("s_nop 1")
        a(f"{op} v{v}, v{t1}, v{t2}")
    def interleave(mf, fill):
        F = list(fill)
        for k, m in enumerate(mf):
            a(m)
            n = (len(F) + (len(mf) - 1 - k)) // (len(mf) - k)
            for x in F[:n]: a(x)
            F = F[n:]

    a(f"v_add_u32 v{vRC}, {FIRSTBUF*32768}, v1")
    a(f"s_mov_b32 s{S_KT}, 0")
    a(f"v_mov_b32 v{vNM[0]}, 0")
    mask_build(0, S_KT)
    for x in qconv(0): a(x)
    for x in qconv(1): a(x)
    for i in range(128): a(f"v_mov_b32 v{O+i}, 0")
    a("s_waitcnt vmcnt(18)")
    a("s_barrier")
    for g in range(8):
        a(f"ds_read_b128 {ar(KS[0]+4*g,4)}, v{vRC} offset:{g*1024}")
    a("s_waitcnt lgkmcnt(0)")
    smf = lambda X: [f"v_mfma_f32_32x32x16_bf16 {vr(SB[X],16)}, {ar(KS[0]+4*g,4)}, {ar(QA+(8*X+g)*4,4)}, " +
                     ((vr(CI[X], 16) if X == 0 else "0") if g == 0 else vr(SB[X], 16)) for g in range(8)]
    for x in smf(0) + smf(1): a(x)
    a("s_nop 15")
    a("s_nop 3")
    for X in range(2):
        s = SB[X]
        a(f"v_max3_f32 v22, v{s}, v{s+1}, v{s+2}")
        for j in range(3, 15, 2):
            a(f"v_max3_f32 v22, v22, v{s+j}, v{s+j+1}")
        a(f"v_max_f32 v22, v22, v{s+15}")
        halfswap_reduce("v_max_f32", 22, 23, 24)
        a(f"v_add_f32 v22, 0x{f32bits(TOFF):08x}, v22")
        a(f"v_sub_f32 v{vNM[X]}, 0, v22")
    L_main, L_main2 = a.newlabel("main"), a.newlabel("main2")
    ds(6)
    a(f"s_branch {L_main2}")
    a.label(L_main)
    for i in range(128):
        a(f"v_mov_b32 v{O+i}, 0")
    a.label(L_main2)
    a(f"s_mov_b32 s{S_KT}, 0")
    for X in range(2):
        a(f"v_mov_b32 v{vL[X]}, 0")
        if LSUM:
            for j in range(16): a(f"v_accvgpr_write_b32 a{LA[X]+j}, 0")
        mask_build(X, S_KT)
    a(f"s_mov_b32 s{S_BUF}, {FIRSTBUF*32768}")
    a(f"v_add_u32 v{vRC}, {FIRSTBUF*32768}, v1")

    OOL = []
    def cost(x):
        if x.startswith("v_mfma_f32_4x4"): return 2
        if x.startswith("v_mfma"): return 2
        if x.startswith("v_exp"): return 2
        return 1
    def step(sX, sbuf, kpar, pvX, vpar_prev, chains, wait0=None, wait8=None, barrier=False):
        slots = [[] for _ in range(16)]
        pb_cur = sbuf; pb_prev = 1 - sbuf
        for g in range(8):
            if sX is not None:
                C = vr(CI[sX], 16) if g == 0 else vr(SB[sbuf], 16)
                slots[g].append(f"v_mfma_f32_32x32x16_bf16 {vr(SB[sbuf],16)}, {ar(KS[kpar]+4*g,4)}, {ar(QA+(8*sX+g)*4,4)}, {C}")
        for kg in range(2):
            for dt in range(4):
                if pvX is not None:
                    acc = vr(O + 16*(4*pvX+dt), 16)
                    slots[8+4*kg+dt].append(f"v_mfma_f32_32x32x16_bf16 {acc}, {ar(VS[vpar_prev]+4*(4*kg+dt),4)}, {vr(PB[pb_prev]+4*kg,4)}, {acc}")
        if LSUM and pvX is not None:
            for kg in range(2):
                slots[9+4*kg].append(f"v_mfma_f32_32x32x16_bf16 {ar(LA[pvX],16)}, {ar(ONEA,4)}, {vr(PB[pb_prev]+4*kg,4)}, {ar(LA[pvX],16)}")
        if barrier and "nobar" not in os.environ.get("EXPF", ""):
            slots[0] += ["s_waitcnt vmcnt(2)", "s_barrier"]
        def sm(X, sb, pb, e, slot):
            s = SB[sb]
            if e < 16: slots[slot].append(f"v_exp_f32 v{s+e}, v{s+e}")
            if not MSUM and not LSUM and 1 <= e <= 16: slots[slot].append(f"v_add_f32 v{vL[X]}, v{vL[X]}, v{s+e-1}")
            if e >= 2 and e % 2 == 0 and e <= 16: slots[slot].append(f"v_cvt_pk_bf16_f32 v{PB[pb]+(e-2)//2}, v{s+e-2}, v{s+e-1}")
            if MSUM and e >= 5 and e % 4 == 1:
                m = (e - 5) // 4
                slots[slot].append(f"v_mfma_f32_4x4x4_16b_bf16 {vr(L4[X],4)}, {vr(ONES,2)}, {vr(PB[pb]+2*m,2)}, {vr(L4[X],4)}")
        if pvX is not None:
            for e in range(6, 18): sm(pvX, 1-sbuf, pb_prev, e, e-6)
        if sX is not None:
            for e in range(0, 6): sm(sX, sbuf, pb_cur, e, 10+e)
        load = [sum(cost(x) for x in sl) for sl in slots]
        load[15] += 1
        load[7] += 1
        for groups, lo, hi in chains:
            cur = lo
            n = len(groups)
            for k, g in enumerate(groups):
                remaining = n - k - 1
                span = hi - cur + 1
                wmax = min(hi, cur + max(0, (span + remaining) // (remaining + 1)))
                isrd = isinstance(g[0], str) and g[0].startswith("ds_read") and os.environ.get("ONERD")
                nrd = lambda t: sum(1 for x in slots[t] if isinstance(x, str) and x.startswith("ds_read"))
                best = min(range(cur, wmax + 1), key=lambda t: (load[t] + (3*nrd(t) if isrd else 0), t))
                slots[best] += g
                load[best] += sum(cost(x) if isinstance(x, str) else 2 for x in g)
                cur = best
        EXPF = os.environ.get("EXPF", "")
        isstr = lambda x: isinstance(x, str)
        if "nodma" in EXPF: slots = [[x for x in sl if not (isstr(x) and "lds" in x and x.startswith("buffer_load"))] for sl in slots]
        if "nolds" in EXPF: slots = [[x for x in sl if not (isstr(x) and x.startswith("ds_read"))] for sl in slots]
        if "nosm" in EXPF: slots = [[x for x in sl if not (isstr(x) and (x.startswith("v_exp") or x.startswith("v_add_f32") or x.startswith("v_cvt")))] for sl in slots]
        if "xadd" in EXPF: slots = [[x for x in sl if not (isstr(x) and x.startswith("v_add_f32"))] for sl in slots]
        if "xcvt" in EXPF: slots = [[x for x in sl if not (isstr(x) and x.startswith("v_cvt"))] for sl in slots]
        if "xexp" in EXPF: slots = [[x for x in sl if not (isstr(x) and x.startswith("v_exp"))] for sl in slots]
        if "movexp" in EXPF: slots = [[(x.replace("v_exp_f32", "v_mov_b32") if isstr(x) else x) for x in sl] for sl in slots]
        if wait8 == "auto": wait8 = sum(1 for sl in slots[:8] for x in sl if isstr(x) and x.startswith("ds_read"))
        for sl in range(16):
            if sl == 0 and wait0 is not None: a(f"s_waitcnt lgkmcnt({wait0})")
            if sl == 8 and wait8 is not None: a(f"s_waitcnt lgkmcnt({wait8})")
            if sl == 10 and sX is not None and pvX is None:
                a("s_nop 15")
            if not slots[sl]: continue
            for x in slots[sl]:
                if isstr(x): a(x)
                else: x()
            if sX is None or pvX is None: a("s_nop 1")

    def kloads(par, vaddr, tile_in_stage):
        return [[f"ds_read_b128 {ar(KS[par]+4*g,4)}, v{vaddr} offset:{tile_in_stage*8192+g*1024}"] for g in range(8)]
    def vloads(par, vaddr, tile_in_stage):
        return [[f"ds_read_b128 {ar(VS[par]+4*g,4)}, v{vaddr} offset:{16384+tile_in_stage*8192+g*1024}"] for g in range(8)]

    def hook(X):
        def emit():
            Lo, Lb = a.newlabel("hko"), a.newlabel("hkb")
            a(f"s_cmp_ge_i32 s{S_KT}, s{S_DM1[X]}")
            a(f"s_cbranch_scc1 {Lo}")
            a.label(Lb)
            def ool():
                a.label(Lo)
                a(f"s_add_u32 s{S_T2}, s{S_KT}, 1")
                mask_build(X, S_T2, init=False)
                a("s_nop 1")
                a(f"s_branch {Lb}")
            OOL.append(ool)
        return [emit]

    nextaddr = [[f"s_add_u32 s{S_BUF}, s{S_BUF}, 32768"], [f"s_cmp_ge_u32 s{S_BUF}, 163840", f"s_cselect_b32 s{S_BUF}, 0, s{S_BUF}"], [f"v_add_u32 v{vRN}, s{S_BUF}, v1"]]
    inc = [f"s_add_u32 s{S_KT}, s{S_KT}, 1"]
    adv = [f"v_mov_b32 v{vRC}, v{vRN}"]

    L_dual, L_dmid, L_single = a.newlabel("dual"), a.newlabel("dmid"), a.newlabel("single")
    a(f"s_sub_u32 s{S_DM1[0]}, s{S_DLO}, 1")
    a(f"s_sub_u32 s{S_DM1[1]}, s{S_DHI}, 1")
    a("s_nop 1")
    step(0, 0, 0, None, None, [(vloads(0, vRC, 0), 0, 15)])
    a(f"s_branch {L_dmid}")
    a.label(L_dual)
    for half in range(2):
        ch = [(vloads(0, vRC, 0), 0, 15)]
        if half == 0: ch.append((dma_kv_instrs(2), 0, 15))
        step(0, 0, 0, 1, 1, ch, wait0=0)
        if half == 0: a.label(L_dmid)
        step(1, 1, 0, 0, 0, [(kloads(1, vRC, 1), 0, 12), ([hook(0), inc], 0, 13), (nextaddr, 0, 15)], wait8="auto")
        step(0, 0, 1, 1, 0, [(vloads(1, vRC, 1), 0, 15)], wait0=0)
        ch = [(kloads(0, vRN, 0), 1, 12), ([hook(0), inc, adv], 1, 13)]
        if half == 1: ch.insert(1, (dma_kv_instrs(0), 1, 15))
        step(1, 1, 1, 0, 1, ch, wait8="auto", barrier=(half == 1))
    a(f"s_cmp_lt_u32 s{S_KT}, s{S_ND}")
    a(f"s_cbranch_scc1 {L_dual}")
    Lsk = a.newlabel("tr")
    a(f"s_cmp_lt_u32 s{S_KT}, s{S_DHI}")
    a(f"s_cbranch_scc1 {Lsk}")
    mask_build(1, S_KT)
    a.label(Lsk)
    a("s_waitcnt lgkmcnt(0)")
    a.label(L_single)
    for half in range(2):
        ch = [(kloads(1, vRC, 1) + vloads(0, vRC, 0), 0, 15), ([hook(1), inc], 4, 13), (nextaddr, 0, 15)]
        if half == 0: ch.insert(1, (dma_kv_instrs(2), 0, 15))
        step(1, 0, 0, 1, 1, ch, wait0=8, wait8="auto")
        ch = [(kloads(0, vRN, 0) + vloads(1, vRC, 1), 1, 15), ([hook(1), inc], 4, 13)]
        if half == 1: ch.insert(1, (dma_kv_instrs(0), 1, 15))
        step(1, 1, 1, 1, 0, ch, wait0=8, wait8="auto", barrier=(half == 1))
        a(adv[0])
    a(f"s_cmp_lt_u32 s{S_KT}, s{S_NT}")
    a(f"s_cbranch_scc1 {L_single}")
    step(None, 0, None, 1, 1, [], wait8=0)
    ds(7)
    a("s_nop 15")
    for X in range(2):
        if LSUM: a(f"v_accvgpr_read_b32 v{vL[X]}, a{LA[X]}")
        else: halfswap_reduce("v_add_f32", vL[X], 23, 24)
    a(f"s_mov_b32 s{S_T0}, 0x{f32bits(LTHRESH):08x}")
    a(f"v_cmp_nlt_f32 vcc, v{vL[0]}, s{S_T0}")
    a(f"v_cmp_nlt_f32 s[{S_T1+1}:{S_T1+2}], v{vL[1]}, s{S_T0}") if False else None
    a("s_mov_b64 s[52:53], vcc")
    a(f"v_cmp_nlt_f32 vcc, v{vL[1]}, s{S_T0}")
    a("s_or_b64 s[52:53], s[52:53], vcc")
    a("s_or_b32 s52, s52, s53")
    a("s_waitcnt vmcnt(0) lgkmcnt(0)")
    a("s_barrier")
    a("v_mov_b32 v22, 0x20000")
    a(f"v_lshl_add_u32 v23, s{S_W}, 2, v22")
    a("v_mov_b32 v24, s52")
    a("ds_write_b32 v23, v24")
    a("s_waitcnt lgkmcnt(0)")
    a("s_barrier")
    a("ds_read_b128 v[24:27], v22")
    a("s_waitcnt lgkmcnt(0)")
    a("v_or3_b32 v24, v24, v25, v26")
    a("v_or_b32 v24, v24, v27")
    a("s_nop 0")
    a(f"v_readfirstlane_b32 s{S_T0}, v24")
    L_ok, L_fb = a.newlabel("ok"), a.newlabel("fb")
    a(f"s_cmp_eq_u32 s{S_T0}, 0")
    a(f"s_cbranch_scc1 {L_ok}")
    a(f"s_cmp_eq_u32 s{S_RETRY}, 0")
    a(f"s_cbranch_scc1 {L_fb}")
    a.label(L_ok)
    for X in range(2):
        a(f"v_rcp_f32 v{vL[X]}, v{vL[X]}")
    for X in range(2):
        T = S_TLO if X == 0 else S_THI
        a(f"s_lshl_b32 s{S_T0}, s{T}, 18")
        a(f"s_lshl_b32 s{S_T1}, s{S_HEAD}, 13")
        a(f"s_add_u32 s{96+2*X}, s{S_T0}, s{S_T1}")
        a(f"s_add_u32 s{97+2*X}, s{96+2*X}, 4096")
    a(f"v_mov_b32 v120, v{vL[0]}")
    a(f"v_mov_b32 v121, v{vL[1]}")
    a("v_mov_b32 v122, v1")
    def epilogue():
        Lsk = a.newlabel("noepi")
        a("s_cmp_lg_u32 s100, 1")
        a(f"s_cbranch_scc1 {Lsk}")
        a("s_mov_b32 s100, 0")
        t = 0
        for X in range(2):
            for dt in range(4):
                for hf in range(2):
                    base = O + 16*(4*X+dt) + 8*hf
                    tmp = 112 + 4*(t % 2); t += 1
                    for j in range(8):
                        a(f"v_mul_f32 v{base+j}, v{120+X}, v{base+j}")
                    for j in range(4):
                        a(f"v_cvt_pk_bf16_f32 v{tmp+j}, v{base+2*j}, v{base+2*j+1}")
                    g = 2*dt + hf
                    a(f"buffer_store_dwordx4 {vr(tmp,4)}, v122, s[28:31], s{96+2*X+(g >= 4)} offen offset:{(g%4)*1024}")
        a.label(Lsk)
    EPI.append(epilogue)
    stamp_flush(a, 4, 6, S_W, 4, vtmp=22)
    a("s_mov_b32 s100, 1")
    a(f"v_lshl_add_u32 v0, s{S_W}, 6, v0")
    a("s_barrier")
    a("s_branch L_k2_aproj")

    a.label(L_fb)
    a(f"s_mov_b32 s{S_RETRY}, 1")
    a(f"v_mov_b32 v26, 0x{f32bits(NEGBIG):08x}")
    a(f"v_mov_b32 v27, 0x{f32bits(NEGBIG):08x}")
    for X in range(2): a(f"v_mov_b32 v{vNM[X]}, 0")
    a(f"s_mov_b32 s{S_KT}, 0")
    a(f"s_lshr_b32 s{S_KVOFF}, s{S_LDSW}, 1")
    L_ml = a.newlabel("ml")
    a.label(L_ml)
    a("s_barrier")
    a(f"s_lshr_b32 s{S_T1}, s{S_LDSW}, 1")
    a(f"s_mov_b32 m0, s{S_T1}")
    a("s_nop 0")
    for j in range(2):
        a(f"buffer_load_dwordx4 v1, s[20:23], s{S_KVOFF} offen offset:{j*1024} lds")
    a(f"s_add_u32 s{S_KVOFF}, s{S_KVOFF}, 8192")
    a("s_waitcnt vmcnt(0)")
    a("s_barrier")
    for g in range(8):
        a(f"ds_read_b128 {ar(KS[0]+4*g,4)}, v1 offset:{g*1024}")
    for X in range(2): mask_build(X, S_KT)
    a("s_waitcnt lgkmcnt(0)")
    a("s_nop 1")
    for X in range(2):
        for g in range(8):
            C = vr(CI[X], 16) if g == 0 else vr(SB[X], 16)
            a(f"v_mfma_f32_32x32x16_bf16 {vr(SB[X],16)}, {ar(KS[0]+4*g,4)}, {ar(QA+(8*X+g)*4,4)}, {C}")
    a("s_nop 15")
    a("s_nop 3")
    for X in range(2):
        s = SB[X]
        for j in range(0, 16, 2):
            a(f"v_max3_f32 v{26+X}, v{26+X}, v{s+j}, v{s+j+1}")
    a(inc[0])
    a(f"s_cmp_lt_u32 s{S_KT}, s{S_NT}")
    a(f"s_cbranch_scc1 {L_ml}")
    for X in range(2):
        halfswap_reduce("v_max_f32", 26+X, 23, 24)
        a(f"v_sub_f32 v{vNM[X]}, 0, v{26+X}")
    a("s_barrier")
    kv_init(FIRSTBUF)
    for k in range(4):
        for g in dma_kv_instrs(2 if k == 3 else 0):
            for x in g: a(x)
    a("s_waitcnt vmcnt(18)")
    a("s_barrier")
    a(f"v_add_u32 v{vRC}, {FIRSTBUF*32768}, v1")
    for g in range(8):
        a(f"ds_read_b128 {ar(KS[0]+4*g,4)}, v{vRC} offset:{g*1024}")
    a("s_waitcnt lgkmcnt(0)")
    a(f"s_branch {L_main}")
    for f in OOL: f()
    STEAL[-1]()

def gen_k2b(a):
    name = "k2b_kernel"
    kernel_header(a, name)
    L_end = "L_k2b_end"
    a("s_cmp_ge_u32 s2, 256")
    a(f"s_cbranch_scc1 {L_end}")
    gen_k2b_body(a, L_end)
    a.label("L_k2_aproj")
    import k4
    sv = k4.PROF; k4.PROF = False
    import common; sv2 = common.PROF; common.PROF = False
    k4.gen_oproj_body(a, "L_k2_after", 3, 2, NB=4, after_issue=EPI[-1], extra_ops=0)
    k4.PROF = sv; common.PROF = sv2
    a.label("L_k2_after")
    a("s_lshr_b32 s3, s2, 3")
    a("s_cmp_lg_u32 s3, 7")
    a(f"s_cbranch_scc1 {L_end}")
    a("s_and_b32 s2, s2, 7")
    a("s_add_u32 s2, s2, 256")
    a("s_mov_b64 exec, -1")
    a("v_lshl_add_u32 v0, s34, 6, v0")
    a("s_waitcnt lgkmcnt(0)")
    a("s_barrier")
    a("s_branch L_k2_aproj")
    a.label(L_end)
    a("s_endpgm")
    return name, kernel_desc(name, 256, 256), "grid=(256,1,1) block=(256,1,1) lds=163840"
```

```python
from common import *
import math, struct, os
import g576

def f32bits(x):
    return struct.unpack("<I", struct.pack("<f", x))[0]

TOFF = 40.0
LTHRESH = 2.0**80
NEGBIG = -1.0e30

EPI = []
def gen_k2b_body(a, L_end):
    NQ = 18
    def stamp(a, idx):
        if PROF:
            a("s_memtime s[52:53]")
            a("s_waitcnt lgkmcnt(0)")
            a("v_mov_b32 v22, s52")
            a(f"v_accvgpr_write_b32 a{224+idx}, v22")
            if idx in (0, 4):
                a("s_memrealtime s[52:53]")
                a("s_waitcnt lgkmcnt(0)")
                a("v_mov_b32 v22, s52")
                a(f"v_accvgpr_write_b32 a{230 + (idx == 4)}, v22")
    def stamp_flush(a, n, wsptr, wave_sreg, nwaves, vtmp=22):
        if not PROF: return
        a("s_waitcnt vmcnt(0)")
        stamp(a, n)
        make_srd(a, 80, wsptr, 16*MB, WS_PROF)
        a(f"s_mul_i32 s84, s2, {nwaves}")
        a(f"s_add_u32 s84, s84, s{wave_sreg}")
        a("s_lshl_b32 s84, s84, 6")
        a("v_mov_b32 v22, 0")
        a("v_accvgpr_read_b32 v24, a224")
        for i in range(n+1):
            a(f"v_accvgpr_read_b32 v23, a{224+i}")
            if i: a("v_sub_u32 v23, v23, v24")
            a(f"buffer_store_dword v23, v22, s[80:83], s84 offen offset:{4*i}")
        a("v_accvgpr_read_b32 v23, a231")
        a("v_accvgpr_read_b32 v24, a230")
        a("v_sub_u32 v23, v23, v24")
        a(f"buffer_store_dword v23, v22, s[80:83], s84 offen offset:{4*(n+1)}")
        a(f"buffer_store_dword v23, v22, s[80:83], s84 offen offset:60")
        a(f"buffer_store_dword v24, v22, s[80:83], s84 offen offset:56")
        a("s_waitcnt vmcnt(0)")
    S_HEAD, S_I, S_W = 32, 33, 34
    S_AOFF, S_WOFF, S_LDSW = 35, 36, 37
    S_T0, S_T1, S_T2 = 38, 39, 40
    S_KVOFF = 41
    S_KVLDS = 42
    S_KT = 43
    S_ND = 44
    S_NT = 45
    S_TLO, S_THI = 46, 47
    S_DLO, S_DHI = 48, 49
    S_BUF = 50
    S_RETRY = 51
    S_LDSW2 = 54
    S_DM1 = [55, 93]
    S_MASK = 56
    a("s_load_dwordx2 s[4:5], s[0:1], 40")
    a("s_load_dwordx2 s[8:9], s[0:1], 56")
    a("s_load_dwordx2 s[6:7], s[0:1], 104")
    a("s_and_b32 s38, s2, 7")
    a("s_lshr_b32 s39, s2, 3")
    a(f"s_and_b32 s{S_I}, s39, 7")
    a("s_lshr_b32 s39, s39, 3")
    a("s_lshl_b32 s38, s38, 2")
    a(f"s_add_u32 s{S_HEAD}, s38, s39")
    a("v_lshrrev_b32 v1, 6, v0")
    a("v_and_b32 v0, 63, v0")
    a(f"v_readfirstlane_b32 s{S_W}, v1")
    a("v_lshlrev_b32 v1, 4, v0")
    for i in range(16):
        m = 0
        for l in range(64):
            if 8*(i//4) + (i % 4) + 4*(l >> 5) <= (l & 31): m |= 1 << l
        a(f"s_mov_b32 s{S_MASK+2*i}, 0x{m & 0xffffffff:08x}")
        a(f"s_mov_b32 s{S_MASK+2*i+1}, 0x{m >> 32:08x}")
    a("s_waitcnt lgkmcnt(0)")
    stamp(a, 0)
    make_srd(a, 12, 4, SZ["B_x"])
    make_srd(a, 16, 8, SZ["B_wq"])
    a(f"s_lshl_b32 s38, s{S_HEAD}, 19")
    for (d, off) in ((20, WS_KB), (24, WS_VB)):
        a(f"s_add_u32 s39, s38, {off}")
        a(f"s_add_u32 s{d}, s6, s39")
        a(f"s_addc_u32 s{d+1}, s7, 0")
        a(f"s_mov_b32 s{d+2}, 524288")
        a(f"s_mov_b32 s{d+3}, 0x00020000")
    make_srd(a, 28, 6, 16*MB, WS_CTX)
    Lz = a.newlabel("z")
    a(f"s_or_b32 s38, s2, s{S_W}")
    a("s_cmp_lg_u32 s38, 0")
    a(f"s_cbranch_scc1 {Lz}")
    make_srd(a, 88, 6, 8192, WS_FLAG)
    a("v_lshlrev_b32 v22, 7, v0")
    a("v_mov_b32 v23, 0")
    a("buffer_store_dword v23, v22, s[88:91], 0 offen")
    a.label(Lz)
    a("s_load_dwordx4 s[96:99], s[0:1], 0")
    a("s_load_dwordx2 s[100:101], s[0:1], 32")
    a("s_load_dwordx2 s[94:95], s[0:1], 80")
    a("s_lshl_b32 s38, s2, 2")
    a(f"s_add_u32 s38, s38, s{S_W}")
    a("s_waitcnt lgkmcnt(0)")
    a("s_mov_b32 s88, s94")
    a("s_mov_b32 s89, s95")
    a("s_mov_b32 s39, s38")
    for lim, p in ((512, 96), (768, 98), (840, 100)):
        a(f"s_cmp_ge_u32 s38, {lim}")
        a(f"s_cselect_b32 s88, s{p}, s88")
        a(f"s_cselect_b32 s89, s{p+1}, s89")
        a(f"s_sub_u32 s40, s38, {lim}")
        a(f"s_cmp_ge_u32 s38, {lim}")
        a("s_cselect_b32 s39, s40, s39")
    a("s_mul_i32 s92, s39, 9216")
    a("s_add_u32 s90, s92, 9216")
    a("s_cmp_ge_u32 s38, 912")
    a("s_cselect_b32 s90, 0, s90")
    a("s_mov_b32 s91, 0x00020000")
    a(f"s_lshl_b32 s{S_DLO}, s{S_I}, 2")
    a(f"s_add_u32 s{S_ND}, s{S_DLO}, 4")
    a(f"s_sub_u32 s{S_DHI}, 60, s{S_DLO}")
    a(f"s_add_u32 s{S_NT}, s{S_DHI}, 4")
    a(f"s_add_u32 s{S_TLO}, s{S_DLO}, s{S_W}")
    a(f"s_add_u32 s{S_THI}, s{S_DHI}, s{S_W}")
    a(f"s_mov_b32 s{S_RETRY}, {1 if os.environ.get('EXPF') else 0}")
    NS = 9
    SLOT = 49152
    vdA = [2, 3]; vdW = 4
    a("s_movk_i32 s38, 1152")
    a("v_lshrrev_b32 v22, 3, v0")
    a("v_mul_lo_u32 v22, v22, s38")
    a("v_lshrrev_b32 v23, 4, v0")
    a("v_and_b32 v24, 7, v0")
    a("v_xor_b32 v25, v23, v24")
    a(f"v_lshl_add_u32 v{vdA[0]}, v25, 4, v22")
    a(f"v_xor_b32 v{vdA[1]}, 64, v{vdA[0]}")
    a("v_xor_b32 v25, 4, v25")
    a(f"v_lshl_add_u32 v{vdA[1]}, v25, 4, v22")
    a("v_lshlrev_b32 v24, 2, v23")
    a("v_and_b32 v25, 15, v0")
    a("v_xor_b32 v24, v24, v25")
    a("v_lshlrev_b32 v24, 4, v24")
    a("v_lshlrev_b32 v23, 13, v23")
    a(f"v_add_u32 v{vdW}, v23, v24")
    a(f"s_lshl_b32 s38, s{S_DLO}, 5")
    a(f"s_lshl_b32 s39, s{S_DHI}, 5")
    a("s_sub_u32 s39, s39, 128")
    a(f"s_cmp_lt_u32 s{S_W}, 2")
    a("s_cselect_b32 s38, s38, s39")
    a(f"s_lshl_b32 s39, s{S_W}, 6")
    a("s_add_u32 s38, s38, s39")
    a(f"s_mul_i32 s{S_AOFF}, s38, 1152")
    a(f"s_lshl_b32 s38, s{S_W}, 17")
    a(f"s_lshl_b32 s39, s{S_HEAD}, 8")
    a(f"s_add_u32 s{S_WOFF}, s38, s39")
    a(f"s_lshl_b32 s{S_LDSW}, s{S_W}, 12")
    a(f"s_lshl_b32 s{S_LDSW2}, s{S_W}, 13")
    bA, bW = 5, 6
    rA = [8, 9, 10, 11]; rW = [12, 13, 14, 15]
    a("v_and_b32 v22, 31, v0")
    a("v_lshrrev_b32 v23, 1, v22")
    a("v_and_b32 v23, 7, v23")
    a("v_lshrrev_b32 v24, 5, v0")
    a("v_xor_b32 v23, v23, v24")
    a("v_lshlrev_b32 v23, 4, v23")
    a(f"s_lshl_b32 s38, s{S_W}, 5")
    a("v_add_u32 v22, s38, v22")
    a("v_lshlrev_b32 v22, 7, v22")
    a(f"v_add_u32 v{bA}, v22, v23")
    a("v_lshrrev_b32 v22, 2, v0")
    a("v_and_b32 v22, 3, v22")
    a("v_lshrrev_b32 v23, 5, v0")
    a("v_lshl_add_u32 v23, v23, 3, v22")
    a("v_lshlrev_b32 v23, 8, v23")
    a("v_lshrrev_b32 v24, 4, v0")
    a("v_and_b32 v24, 1, v24")
    a("v_lshlrev_b32 v24, 5, v24")
    a("v_and_b32 v25, 3, v0")
    a("v_lshlrev_b32 v25, 3, v25")
    a("v_add3_u32 v23, v23, v24, v25")
    a("v_lshlrev_b32 v22, 6, v22")
    a(f"v_add_u32 v{bW}, v23, v22")
    O = 128
    qs = [dict(act=32, w=40), dict(act=56, w=64)]
    def q_addr(S):
        o = (S % 3) * SLOT
        L = [f"v_add_u32 v{rA[0]}, {o}, v{bA}", f"v_add_u32 v{rW[0]}, {o+32768}, v{bW}"]
        L += [f"v_xor_b32 v{rA[k]}, {k*32}, v{rA[0]}" for k in range(1, 4)]
        L += [f"v_xor_b32 v{rW[k]}, {k*64}, v{rW[0]}" for k in range(1, 4)]
        return L
    def dma_q_groups(S):
        o = (S % 3) * SLOT
        G = []
        for j in range(8):
            G.append([f"s_add_u32 m0, s{S_LDSW2}, {o + j*1024}",
                      f"s_add_u32 s{S_T0}, s{S_AOFF}, {S*128 + j*8*1152}",
                      f"buffer_load_dwordx4 v{vdA[j%2]}, s[12:15], s{S_T0} offen lds"])
        for j in range(4):
            G.append([f"s_add_u32 m0, s{S_LDSW}, {o + 32768 + j*1024}",
                      f"s_add_u32 s{S_T0}, s{S_WOFF}, {(S*64 + 4*j)*8192}",
                      f"buffer_load_dwordx4 v{vdW}, s[16:19], s{S_T0} offen lds"])
        return G

    def dma_kv_instrs(pf=1):
        g = []
        for part in range(2):
            for j in range(4):
                ins = []
                if j == 0:
                    ins.append(f"s_add_u32 m0, s{S_KVLDS}, {part*16384}")
                    ins.append("s_nop 0")
                ins.append(f"buffer_load_dwordx4 v1, s[{20+4*part}:{23+4*part}], s{S_KVOFF} offen offset:{j*1024} lds")
                g.append(ins)
        g.append([f"s_add_u32 s{S_KVOFF}, s{S_KVOFF}, 16384", f"s_add_u32 s{S_KVLDS}, s{S_KVLDS}, 32768"])
        g.append([f"s_cmp_ge_u32 s{S_KVLDS}, 163840", f"s_cselect_b32 s{S_KVLDS}, s{S_LDSW}, s{S_KVLDS}"])
        for _ in range(pf):
            g.append(["buffer_load_dwordx4 v[28:31], v1, s[88:91], s92 offen", "s_add_u32 s92, s92, 1024"])
        return g

    def kv_init(firstbuf):
        a(f"s_mov_b32 s{S_KVOFF}, s{S_LDSW}")
        a(f"s_add_u32 s{S_KVLDS}, s{S_LDSW}, {firstbuf*32768}")

    def q_reads(ks, st):
        act = [f"ds_read_b128 {vr(st['act']+4*X,4)}, v{rA[ks]} offset:{X*16384}" for X in range(2)]
        w = [[f"ds_read_b64_tr_b16 {vr(st['w']+4*dt+2*rd,2)}, v{rW[dt]} offset:{ks*4096+rd*1024}" for rd in range(2)] for dt in range(4)]
        return [act[0]] + w[0] + [act[1]] + w[1] + w[2] + w[3]

    def q_half(st, first, fillers):
        need = [3, 4, 6, 6, 8, 8, 10, 10]
        F = list(fillers)
        issued_after = 0
        k = 0
        for dt in range(4):
            for X in range(2):
                if k == 0 or need[k] != need[k-1]:
                    a(f"s_waitcnt lgkmcnt({min(15, 10 - need[k] + issued_after)})")
                acc = vr(O + 16*(4*X+dt), 16)
                C = "0" if first else acc
                a(f"v_mfma_f32_32x32x16_bf16 {acc}, {vr(st['w']+4*dt,4)}, {vr(st['act']+4*X,4)}, {C}")
                n = (len(F) + (7 - k)) // (8 - k)
                for _ in range(n):
                    g = F.pop(0)
                    for x in g:
                        a(x)
                        if x.startswith("ds_read"): issued_after += 1
                k += 1
    pairs = lambda L: [[x, y] for x, y in zip(L[0::2], L[1::2])]

    FIRSTBUF = 0
    kv_init(FIRSTBUF)
    ops = []
    for S in range(2):
        for g in dma_q_groups(S):
            for x in g: a(x)
        ops += [S] * 12
    for x in q_addr(0): a(x)
    a("s_waitcnt vmcnt(12)")
    a("s_barrier")
    stamp(a, 1)
    for x in q_reads(0, qs[0]): a(x)
    pend = dma_q_groups(2); ops += [2] * 12
    for S in range(NS):
        for ks in range(4):
            cur = qs[ks % 2]; nxt = qs[(ks + 1) % 2]
            F = []
            if ks < 3:
                F += pairs(q_reads(ks + 1, nxt))
                take = pend[:4]; pend = pend[4:]
                F += take
                q_half(cur, S == 0 and ks == 0, F)
            else:
                need = S + 1 if S + 1 < NS else "kv0"
                last = max(i for i, o in enumerate(ops) if o == need)
                a(f"s_waitcnt vmcnt({len(ops) - 1 - last}) lgkmcnt(0)")
                a("s_barrier")
                if S + 1 < NS:
                    for x in q_addr(S + 1): a(x)
                    F += pairs(q_reads(0, nxt))
                assert not pend
                if S + 3 < NS:
                    pend = dma_q_groups(S + 3); ops += [S + 3] * 12
                elif S == 6:
                    pend = dma_kv_instrs(0); ops += ["kv0"] * 8
                elif S == 7:
                    pend = dma_kv_instrs(0) + dma_kv_instrs(0); ops += ["kv1"] * 8 + ["kv2"] * 8
                    take = pend[:8]; pend = pend[8:]; F += take
                elif S == 8:
                    F += dma_kv_instrs(2); ops += ["kv3"] * 8 + ["pf"] * 2
                q_half(cur, False, F)
    stamp(a, 2)
    QA = 0; KS = [64, 96]; VS = [128, 160]
    SB = [32, 48]; CI = [64, 80]; PB = [96, 104]
    vL = [18, 19]; vNM = [20, 21]; vRC, vRN = 16, 17
    MSUM = False
    LSUM = bool(os.environ.get("LSUM"))
    LA = [192, 208]; ONEA = 240
    if LSUM:
        a("v_mov_b32 v22, 0x3f803f80")
        for j in range(4): a(f"v_accvgpr_write_b32 a{ONEA+j}, v22")
    def qconv(X):
        L = []
        for dt in range(4):
            for hf in range(2):
                base = O + 16*(4*X+dt) + 8*hf
                g = 2*dt + hf
                t = 112 + 4*(g % 4)
                L += [f"v_cvt_pk_bf16_f32 v{t+j}, v{base+2*j}, v{base+2*j+1}" for j in range(4)]
                L += [f"v_accvgpr_write_b32 a{QA + (8*X+g)*4 + j}, v{t+j}" for j in range(4)]
        return L

    def mask_build(X, kt_sreg, init=True):
        Ld, Lf, Lx = a.newlabel("md"), a.newlabel("mf"), a.newlabel("mx")
        T = S_TLO if X == 0 else S_THI
        a(f"s_cmp_eq_u32 s{kt_sreg}, s{T}")
        a(f"s_cbranch_scc1 {Ld}")
        if init:
            a(f"s_cmp_gt_u32 s{kt_sreg}, s{T}")
            a(f"s_cbranch_scc1 {Lf}")
            for i in range(16): a(f"v_mov_b32 v{CI[X]+i}, v{vNM[X]}")
            a(f"s_branch {Lx}")
        else:
            a(f"s_cmp_eq_u32 s{S_KT}, s{T}")
            a(f"s_cbranch_scc1 {Lf}")
            a(f"s_branch {Lx}")
        a.label(Ld)
        a(f"v_mov_b32 v22, 0x{f32bits(NEGBIG):08x}")
        for i in range(16): a(f"v_cndmask_b32 v{CI[X]+i}, v22, v{vNM[X]}, s[{S_MASK+2*i}:{S_MASK+2*i+1}]")
        a(f"s_branch {Lx}")
        a.label(Lf)
        for i in range(16): a(f"v_mov_b32 v{CI[X]+i}, 0x{f32bits(NEGBIG):08x}")
        a.label(Lx)

    def halfswap_reduce(op, v, t1, t2):
        a(f"v_mov_b32 v{t1}, v{v}")
        a(f"v_mov_b32 v{t2}, v{v}")
        a("s_nop 1")
        a(f"v_permlane32_swap_b32 v{t1}, v{t2}")
        a("s_nop 1")
        a(f"{op} v{v}, v{t1}, v{t2}")
    def interleave(mf, fill):
        F = list(fill)
        for k, m in enumerate(mf):
            a(m)
            n = (len(F) + (len(mf) - 1 - k)) // (len(mf) - k)
            for x in F[:n]: a(x)
            F = F[n:]

    a(f"v_add_u32 v{vRC}, {FIRSTBUF*32768}, v1")
    for g in range(8):
        a(f"ds_read_b128 {ar(KS[0]+4*g,4)}, v{vRC} offset:{g*1024}")
    a(f"s_mov_b32 s{S_KT}, 0")
    a(f"v_mov_b32 v{vNM[0]}, 0")
    a("s_nop 7")
    mask_build(0, S_KT)
    for x in qconv(0): a(x)
    a("s_waitcnt lgkmcnt(0)")
    smf = lambda X: [f"v_mfma_f32_32x32x16_bf16 {vr(SB[X],16)}, {ar(KS[0]+4*g,4)}, {ar(QA+(8*X+g)*4,4)}, " +
                     ((vr(CI[X], 16) if X == 0 else "0") if g == 0 else vr(SB[X], 16)) for g in range(8)]
    interleave(smf(0), qconv(1))
    a("s_nop 1")
    interleave(smf(1), [f"v_mov_b32 v{O+i}, 0" for i in range(128)])
    for X in range(2):
        s = SB[X]
        a(f"v_max3_f32 v22, v{s}, v{s+1}, v{s+2}")
        for j in range(3, 15, 2):
            a(f"v_max3_f32 v22, v22, v{s+j}, v{s+j+1}")
        a(f"v_max_f32 v22, v22, v{s+15}")
        halfswap_reduce("v_max_f32", 22, 23, 24)
        a(f"v_add_f32 v22, 0x{f32bits(TOFF):08x}, v22")
        a(f"v_sub_f32 v{vNM[X]}, 0, v22")
    L_main, L_main2 = a.newlabel("main"), a.newlabel("main2")
    a("s_waitcnt vmcnt(18)")
    a("s_barrier")
    a(f"s_branch {L_main2}")
    a.label(L_main)
    for i in range(128):
        a(f"v_mov_b32 v{O+i}, 0")
    a.label(L_main2)
    a(f"s_mov_b32 s{S_KT}, 0")
    for X in range(2):
        a(f"v_mov_b32 v{vL[X]}, 0")
        if LSUM:
            for j in range(16): a(f"v_accvgpr_write_b32 a{LA[X]+j}, 0")
        mask_build(X, S_KT)
    a(f"s_mov_b32 s{S_BUF}, {FIRSTBUF*32768}")
    a(f"v_add_u32 v{vRC}, {FIRSTBUF*32768}, v1")

    OOL = []
    def cost(x):
        if x.startswith("v_mfma_f32_4x4"): return 2
        if x.startswith("v_mfma"): return 2
        if x.startswith("v_exp"): return 2
        return 1
    def step(sX, sbuf, kpar, pvX, vpar_prev, chains, wait0=None, wait8=None, barrier=False):
        slots = [[] for _ in range(16)]
        pb_cur = sbuf; pb_prev = 1 - sbuf
        for g in range(8):
            if sX is not None:
                C = vr(CI[sX], 16) if g == 0 else vr(SB[sbuf], 16)
                slots[g].append(f"v_mfma_f32_32x32x16_bf16 {vr(SB[sbuf],16)}, {ar(KS[kpar]+4*g,4)}, {ar(QA+(8*sX+g)*4,4)}, {C}")
        for kg in range(2):
            for dt in range(4):
                if pvX is not None:
                    acc = vr(O + 16*(4*pvX+dt), 16)
                    slots[8+4*kg+dt].append(f"v_mfma_f32_32x32x16_bf16 {acc}, {ar(VS[vpar_prev]+4*(4*kg+dt),4)}, {vr(PB[pb_prev]+4*kg,4)}, {acc}")
        if LSUM and pvX is not None:
            for kg in range(2):
                slots[9+4*kg].append(f"v_mfma_f32_32x32x16_bf16 {ar(LA[pvX],16)}, {ar(ONEA,4)}, {vr(PB[pb_prev]+4*kg,4)}, {ar(LA[pvX],16)}")
        if barrier and "nobar" not in os.environ.get("EXPF", ""):
            slots[0] += ["s_waitcnt vmcnt(2)", "s_barrier"]
        def sm(X, sb, pb, e, slot):
            s = SB[sb]
            if e < 16: slots[slot].append(f"v_exp_f32 v{s+e}, v{s+e}")
            if not MSUM and not LSUM and 1 <= e <= 16: slots[slot].append(f"v_add_f32 v{vL[X]}, v{vL[X]}, v{s+e-1}")
            if e >= 2 and e % 2 == 0 and e <= 16: slots[slot].append(f"v_cvt_pk_bf16_f32 v{PB[pb]+(e-2)//2}, v{s+e-2}, v{s+e-1}")
            if MSUM and e >= 5 and e % 4 == 1:
                m = (e - 5) // 4
                slots[slot].append(f"v_mfma_f32_4x4x4_16b_bf16 {vr(L4[X],4)}, {vr(ONES,2)}, {vr(PB[pb]+2*m,2)}, {vr(L4[X],4)}")
        if pvX is not None:
            for e in range(6, 18): sm(pvX, 1-sbuf, pb_prev, e, e-6)
        if sX is not None:
            for e in range(0, 6): sm(sX, sbuf, pb_cur, e, 10+e)
        load = [sum(cost(x) for x in sl) for sl in slots]
        load[15] += 1
        load[7] += 1
        for groups, lo, hi in chains:
            cur = lo
            n = len(groups)
            for k, g in enumerate(groups):
                remaining = n - k - 1
                span = hi - cur + 1
                wmax = min(hi, cur + max(0, (span + remaining) // (remaining + 1)))
                isrd = isinstance(g[0], str) and g[0].startswith("ds_read") and os.environ.get("ONERD")
                nrd = lambda t: sum(1 for x in slots[t] if isinstance(x, str) and x.startswith("ds_read"))
                best = min(range(cur, wmax + 1), key=lambda t: (load[t] + (3*nrd(t) if isrd else 0), t))
                slots[best] += g
                load[best] += sum(cost(x) if isinstance(x, str) else 2 for x in g)
                cur = best
        EXPF = os.environ.get("EXPF", "")
        isstr = lambda x: isinstance(x, str)
        if "nodma" in EXPF: slots = [[x for x in sl if not (isstr(x) and "lds" in x and x.startswith("buffer_load"))] for sl in slots]
        if "nolds" in EXPF: slots = [[x for x in sl if not (isstr(x) and x.startswith("ds_read"))] for sl in slots]
        if "nosm" in EXPF: slots = [[x for x in sl if not (isstr(x) and (x.startswith("v_exp") or x.startswith("v_add_f32") or x.startswith("v_cvt")))] for sl in slots]
        if "xadd" in EXPF: slots = [[x for x in sl if not (isstr(x) and x.startswith("v_add_f32"))] for sl in slots]
        if "xcvt" in EXPF: slots = [[x for x in sl if not (isstr(x) and x.startswith("v_cvt"))] for sl in slots]
        if "xexp" in EXPF: slots = [[x for x in sl if not (isstr(x) and x.startswith("v_exp"))] for sl in slots]
        if "movexp" in EXPF: slots = [[(x.replace("v_exp_f32", "v_mov_b32") if isstr(x) else x) for x in sl] for sl in slots]
        if wait8 == "auto": wait8 = sum(1 for sl in slots[:8] for x in sl if isstr(x) and x.startswith("ds_read"))
        for sl in range(16):
            if sl == 0 and wait0 is not None: a(f"s_waitcnt lgkmcnt({wait0})")
            if sl == 8 and wait8 is not None: a(f"s_waitcnt lgkmcnt({wait8})")
            if sl == 10 and sX is not None and pvX is None:
                a("s_nop 15")
            if not slots[sl]: continue
            for x in slots[sl]:
                if isstr(x): a(x)
                else: x()
            if sX is None or pvX is None: a("s_nop 1")

    def kloads(par, vaddr, tile_in_stage):
        return [[f"ds_read_b128 {ar(KS[par]+4*g,4)}, v{vaddr} offset:{tile_in_stage*8192+g*1024}"] for g in range(8)]
    def vloads(par, vaddr, tile_in_stage):
        return [[f"ds_read_b128 {ar(VS[par]+4*g,4)}, v{vaddr} offset:{16384+tile_in_stage*8192+g*1024}"] for g in range(8)]

    def hook(X):
        def emit():
            Lo, Lb = a.newlabel("hko"), a.newlabel("hkb")
            a(f"s_cmp_ge_i32 s{S_KT}, s{S_DM1[X]}")
            a(f"s_cbranch_scc1 {Lo}")
            a.label(Lb)
            def ool():
                a.label(Lo)
                a(f"s_add_u32 s{S_T2}, s{S_KT}, 1")
                mask_build(X, S_T2, init=False)
                a("s_nop 1")
                a(f"s_branch {Lb}")
            OOL.append(ool)
        return [emit]

    nextaddr = [[f"s_add_u32 s{S_BUF}, s{S_BUF}, 32768"], [f"s_cmp_ge_u32 s{S_BUF}, 163840", f"s_cselect_b32 s{S_BUF}, 0, s{S_BUF}"], [f"v_add_u32 v{vRN}, s{S_BUF}, v1"]]
    inc = [f"s_add_u32 s{S_KT}, s{S_KT}, 1"]
    adv = [f"v_mov_b32 v{vRC}, v{vRN}"]

    L_dual, L_dmid, L_single = a.newlabel("dual"), a.newlabel("dmid"), a.newlabel("single")
    a(f"s_sub_u32 s{S_DM1[0]}, s{S_DLO}, 1")
    a(f"s_sub_u32 s{S_DM1[1]}, s{S_DHI}, 1")
    a("s_nop 1")
    step(0, 0, 0, None, None, [(vloads(0, vRC, 0), 0, 15)])
    a(f"s_branch {L_dmid}")
    a.label(L_dual)
    for half in range(2):
        ch = [(vloads(0, vRC, 0), 0, 15)]
        if half == 0: ch.append((dma_kv_instrs(2), 0, 15))
        step(0, 0, 0, 1, 1, ch, wait0=0)
        if half == 0: a.label(L_dmid)
        step(1, 1, 0, 0, 0, [(kloads(1, vRC, 1), 0, 12), ([hook(0), inc], 0, 13), (nextaddr, 0, 15)], wait8="auto")
        step(0, 0, 1, 1, 0, [(vloads(1, vRC, 1), 0, 15)], wait0=0)
        ch = [(kloads(0, vRN, 0), 1, 12), ([hook(0), inc, adv], 1, 13)]
        if half == 1: ch.insert(1, (dma_kv_instrs(0), 1, 15))
        step(1, 1, 1, 0, 1, ch, wait8="auto", barrier=(half == 1))
    a(f"s_cmp_lt_u32 s{S_KT}, s{S_ND}")
    a(f"s_cbranch_scc1 {L_dual}")
    Lsk = a.newlabel("tr")
    a(f"s_cmp_lt_u32 s{S_KT}, s{S_DHI}")
    a(f"s_cbranch_scc1 {Lsk}")
    mask_build(1, S_KT)
    a.label(Lsk)
    a("s_waitcnt lgkmcnt(0)")
    a.label(L_single)
    for half in range(2):
        ch = [(kloads(1, vRC, 1) + vloads(0, vRC, 0), 0, 15), ([hook(1), inc], 4, 13), (nextaddr, 0, 15)]
        if half == 0: ch.insert(1, (dma_kv_instrs(2), 0, 15))
        step(1, 0, 0, 1, 1, ch, wait0=8, wait8="auto")
        ch = [(kloads(0, vRN, 0) + vloads(1, vRC, 1), 1, 15), ([hook(1), inc], 4, 13)]
        if half == 1: ch.insert(1, (dma_kv_instrs(0), 1, 15))
        step(1, 1, 1, 1, 0, ch, wait0=8, wait8="auto", barrier=(half == 1))
        a(adv[0])
    a(f"s_cmp_lt_u32 s{S_KT}, s{S_NT}")
    a(f"s_cbranch_scc1 {L_single}")
    step(None, 0, None, 1, 1, [], wait8=0)
    stamp(a, 3)
    a("s_nop 15")
    for X in range(2):
        if LSUM: a(f"v_accvgpr_read_b32 v{vL[X]}, a{LA[X]}")
        else: halfswap_reduce("v_add_f32", vL[X], 23, 24)
    a(f"s_mov_b32 s{S_T0}, 0x{f32bits(LTHRESH):08x}")
    a(f"v_cmp_nlt_f32 vcc, v{vL[0]}, s{S_T0}")
    a(f"v_cmp_nlt_f32 s[{S_T1+1}:{S_T1+2}], v{vL[1]}, s{S_T0}") if False else None
    a("s_mov_b64 s[52:53], vcc")
    a(f"v_cmp_nlt_f32 vcc, v{vL[1]}, s{S_T0}")
    a("s_or_b64 s[52:53], s[52:53], vcc")
    a("s_or_b32 s52, s52, s53")
    a("s_waitcnt vmcnt(0) lgkmcnt(0)")
    a("s_barrier")
    a("v_mov_b32 v22, 0x20000")
    a(f"v_lshl_add_u32 v23, s{S_W}, 2, v22")
    a("v_mov_b32 v24, s52")
    a("ds_write_b32 v23, v24")
    a("s_waitcnt lgkmcnt(0)")
    a("s_barrier")
    a("ds_read_b128 v[24:27], v22")
    a("s_waitcnt lgkmcnt(0)")
    a("v_or3_b32 v24, v24, v25, v26")
    a("v_or_b32 v24, v24, v27")
    a("s_nop 0")
    a(f"v_readfirstlane_b32 s{S_T0}, v24")
    L_ok, L_fb = a.newlabel("ok"), a.newlabel("fb")
    a(f"s_cmp_eq_u32 s{S_T0}, 0")
    a(f"s_cbranch_scc1 {L_ok}")
    a(f"s_cmp_eq_u32 s{S_RETRY}, 0")
    a(f"s_cbranch_scc1 {L_fb}")
    a.label(L_ok)
    for X in range(2):
        a(f"v_rcp_f32 v{vL[X]}, v{vL[X]}")
    for X in range(2):
        T = S_TLO if X == 0 else S_THI
        a(f"s_lshl_b32 s{S_T0}, s{T}, 18")
        a(f"s_lshl_b32 s{S_T1}, s{S_HEAD}, 13")
        a(f"s_add_u32 s{96+2*X}, s{S_T0}, s{S_T1}")
        a(f"s_add_u32 s{97+2*X}, s{96+2*X}, 4096")
    a(f"v_mov_b32 v120, v{vL[0]}")
    a(f"v_mov_b32 v121, v{vL[1]}")
    a("v_mov_b32 v122, v1")
    def epilogue():
        Lsk = a.newlabel("noepi")
        a("s_cmp_lg_u32 s100, 1")
        a(f"s_cbranch_scc1 {Lsk}")
        a("s_mov_b32 s100, 0")
        t = 0
        for X in range(2):
            for dt in range(4):
                for hf in range(2):
                    base = O + 16*(4*X+dt) + 8*hf
                    tmp = 112 + 4*(t % 2); t += 1
                    for j in range(8):
                        a(f"v_mul_f32 v{base+j}, v{120+X}, v{base+j}")
                    for j in range(4):
                        a(f"v_cvt_pk_bf16_f32 v{tmp+j}, v{base+2*j}, v{base+2*j+1}")
                    g = 2*dt + hf
                    a(f"buffer_store_dwordx4 {vr(tmp,4)}, v122, s[28:31], s{96+2*X+(g >= 4)} offen offset:{(g%4)*1024}")
        a.label(Lsk)
    EPI.append(epilogue)
    stamp_flush(a, 4, 6, S_W, 4, vtmp=22)
    a("s_mov_b32 s100, 1")
    a(f"v_lshl_add_u32 v0, s{S_W}, 6, v0")
    a("s_barrier")
    a("s_branch L_k2_aproj")

    a.label(L_fb)
    a(f"s_mov_b32 s{S_RETRY}, 1")
    a(f"v_mov_b32 v26, 0x{f32bits(NEGBIG):08x}")
    a(f"v_mov_b32 v27, 0x{f32bits(NEGBIG):08x}")
    for X in range(2): a(f"v_mov_b32 v{vNM[X]}, 0")
    a(f"s_mov_b32 s{S_KT}, 0")
    a(f"s_lshr_b32 s{S_KVOFF}, s{S_LDSW}, 1")
    L_ml = a.newlabel("ml")
    a.label(L_ml)
    a("s_barrier")
    a(f"s_lshr_b32 s{S_T1}, s{S_LDSW}, 1")
    a(f"s_mov_b32 m0, s{S_T1}")
    a("s_nop 0")
    for j in range(2):
        a(f"buffer_load_dwordx4 v1, s[20:23], s{S_KVOFF} offen offset:{j*1024} lds")
    a(f"s_add_u32 s{S_KVOFF}, s{S_KVOFF}, 8192")
    a("s_waitcnt vmcnt(0)")
    a("s_barrier")
    for g in range(8):
        a(f"ds_read_b128 {ar(KS[0]+4*g,4)}, v1 offset:{g*1024}")
    for X in range(2): mask_build(X, S_KT)
    a("s_waitcnt lgkmcnt(0)")
    a("s_nop 1")
    for X in range(2):
        for g in range(8):
            C = vr(CI[X], 16) if g == 0 else vr(SB[X], 16)
            a(f"v_mfma_f32_32x32x16_bf16 {vr(SB[X],16)}, {ar(KS[0]+4*g,4)}, {ar(QA+(8*X+g)*4,4)}, {C}")
    a("s_nop 15")
    a("s_nop 3")
    for X in range(2):
        s = SB[X]
        for j in range(0, 16, 2):
            a(f"v_max3_f32 v{26+X}, v{26+X}, v{s+j}, v{s+j+1}")
    a(inc[0])
    a(f"s_cmp_lt_u32 s{S_KT}, s{S_NT}")
    a(f"s_cbranch_scc1 {L_ml}")
    for X in range(2):
        halfswap_reduce("v_max_f32", 26+X, 23, 24)
        a(f"v_sub_f32 v{vNM[X]}, 0, v{26+X}")
    a("s_barrier")
    kv_init(FIRSTBUF)
    for k in range(4):
        for g in dma_kv_instrs(2 if k == 3 else 0):
            for x in g: a(x)
    a("s_waitcnt vmcnt(18)")
    a("s_barrier")
    a(f"v_add_u32 v{vRC}, {FIRSTBUF*32768}, v1")
    for g in range(8):
        a(f"ds_read_b128 {ar(KS[0]+4*g,4)}, v{vRC} offset:{g*1024}")
    a("s_waitcnt lgkmcnt(0)")
    a(f"s_branch {L_main}")
    for f in OOL: f()

def gen_k2b(a):
    name = "k2b_kernel"
    kernel_header(a, name)
    L_end = "L_k2b_end"
    a("s_cmp_ge_u32 s2, 256")
    a(f"s_cbranch_scc1 {L_end}")
    gen_k2b_body(a, L_end)
    a.label("L_k2_aproj")
    import k4
    sv = k4.PROF; k4.PROF = False
    import common; sv2 = common.PROF; common.PROF = False
    k4.gen_oproj_body(a, "L_k2_after", 3, 2, NB=4, after_issue=EPI[-1], extra_ops=0)
    k4.PROF = sv; common.PROF = sv2
    a.label("L_k2_after")
    a("s_lshr_b32 s3, s2, 3")
    a("s_cmp_lg_u32 s3, 7")
    a(f"s_cbranch_scc1 {L_end}")
    a("s_and_b32 s2, s2, 7")
    a("s_add_u32 s2, s2, 256")
    a("s_mov_b64 exec, -1")
    a("v_lshl_add_u32 v0, s34, 6, v0")
    a("s_waitcnt lgkmcnt(0)")
    a("s_barrier")
    a("s_branch L_k2_aproj")
    a.label(L_end)
    a("s_endpgm")
    return name, kernel_desc(name, 256, 244), "grid=(256,1,1) block=(256,1,1) lds=163840"
```

```python
from common import *
import math, struct, os
def f32bits(x): return struct.unpack("<I", struct.pack("<f", x))[0]
TOFF = 40.0
LTHRESH = 2.0**80
NEGBIG = -1.0e30

def gen_k3a_body(a, L_end, L_claimed=None):
    a("s_load_dwordx2 s[6:7], s[0:1], 104")
    if os.environ.get("APRIO", "1") != "0": a(f"s_setprio {os.environ.get('APRIO', '1')}")
    a("v_lshrrev_b32 v1, 6, v0")
    a("v_and_b32 v0, 63, v0")
    a("v_readfirstlane_b32 s34, v1")
    a("s_waitcnt lgkmcnt(0)")
    stamp(a, 0)
    make_srd(a, 12, 6, KVA_SIZE, WS_KVA)
    make_srd(a, 16, 6, 2048*1152, WS_QA)
    make_srd(a, 20, 6, 2048*1152, WS_OA)
    a("v_lshlrev_b32 v1, 4, v0")
    a("s_mul_i32 s35, s34, 5120")
    def dma(chunk_sreg_off, c_static=None):
        pass
    def dma_chunk(c):
        G = []
        lb = (c % 4) * KCH; gb = c * KCH
        G.append([f"s_add_u32 s36, s35, {gb}", f"s_add_u32 m0, s35, {lb}", "s_nop 0",
                  "buffer_load_dwordx4 v1, s[12:15], s36 offen lds"])
        for j in range(1, 4):
            G.append([f"buffer_load_dwordx4 v1, s[12:15], s36 offen offset:{j*1024} lds"])
        G.append([f"s_add_u32 s36, s35, {gb+4096}", f"s_add_u32 m0, s35, {lb+4096}", "s_nop 0",
                  "buffer_load_dwordx4 v1, s[12:15], s36 offen lds"])
        return G
    a("s_lshr_b32 s37, s66, 2")
    a("s_and_b32 s38, s66, 3")
    a("s_lshl_b32 s38, s38, 3")
    a("s_lshl_b32 s39, s34, 1")
    a("s_add_u32 s38, s38, s39")
    a("v_and_b32 v2, 31, v0")
    a("v_lshrrev_b32 v3, 5, v0")
    a("s_lshl_b32 s37, s37, 5")
    a("v_add_u32 v4, s37, v2")
    a("s_movk_i32 s39, 1152")
    a("v_mul_lo_u32 v4, v4, s39")
    a("v_lshl_add_u32 v4, v3, 3, v4")
    a("s_mul_i32 s38, s38, 36")
    Q0 = [8, 16]; Q1 = [12, 20]
    K0 = [24, 28]; K1 = [32, 36]; VF = [40, 48]; SB = [56, 72]; PB = [88, 96]; O = [104, 120]
    T = 136
    for X in range(2):
        a(f"buffer_load_dwordx2 {vr(Q0[X],2)}, v4, s[16:19], s38 offen offset:{36*X}")
        a(f"buffer_load_dwordx2 {vr(Q0[X]+2,2)}, v4, s[16:19], s38 offen offset:{36*X+16}")
        a(f"buffer_load_dword v{Q1[X]}, v4, s[16:19], s38 offen offset:{36*X+32}")
    for c in range(3):
        for g in dma_chunk(c):
            for x in g: a(x)
    for b in range(2):
        a(f"v_mov_b32 v{K1[b]+1}, 0x3f80")
        a(f"v_mov_b32 v{K1[b]+2}, 0")
        a(f"v_mov_b32 v{K1[b]+3}, 0")
        for j in range(1, 4): a(f"v_mov_b32 v{Q1[b]+j}, 0")
    vK0, vK1, vV = 1, 6, 7
    vK0h, vK1h, vVh = 144, 145, 146
    a(f"v_lshlrev_b32 v{vK1}, 2, v2")
    a(f"v_add_u32 v{vK1}, {KA1_OFF}, v{vK1}")
    a(f"v_min_u32 v{vV}, 19, v2")
    a(f"v_lshlrev_b32 v{vV}, 4, v{vV}")
    a(f"v_mul_u32_u24 v{T}, 320, v3")
    a(f"v_add_u32 v{vV}, v{vV}, v{T}")
    a(f"v_add_u32 v{vV}, {VA_OFF}, v{vV}")
    CUR = [144, 145, 146]; NXT = [141, 142, 143]
    for x, y in zip((vK0, vK1, vV), CUR): a(f"v_mov_b32 v{y}, v{x}")
    a("v_cmp_gt_u32 s[40:41], 32, v0")
    a("s_waitcnt vmcnt(10)")
    for X in range(2): a(f"v_cndmask_b32 v{Q1[X]}, 0, v{Q1[X]}, s[40:41]")
    if L_claimed:
        Lc = a.newlabel("cl")
        a(f"v_mov_b32 v{T}, 0")
        a("s_cmp_lg_u32 s34, 0")
        a(f"s_cbranch_scc1 {Lc}")
        a("v_and_b32 v147, s68, v147")
        a("s_nop 0")
        a(f"v_readfirstlane_b32 s3, v147")
        a("s_nop 1")
        a(f"v_mov_b32 v{T+1}, s3")
        a(f"ds_write_b32 v{T}, v{T+1} offset:65000")
        a("s_waitcnt lgkmcnt(0)")
        a.label(Lc)
    a("s_barrier")
    if L_claimed:
        a(f"ds_read_b32 v{T+1}, v{T} offset:65000")
        a("s_waitcnt lgkmcnt(0)")
        a(f"v_readfirstlane_b32 s3, v{T+1}")
        a("s_cmp_lg_u32 s3, 0")
        a(f"s_cbranch_scc1 {L_claimed}")
    stamp(a, 1)

    def halfswap(v, t1, t2):
        a(f"v_mov_b32 v{t1}, v{v}")
        a(f"v_mov_b32 v{t2}, v{v}")
        a("s_nop 1")
        a(f"v_permlane32_swap_b32 v{t1}, v{t2}")
        a("s_nop 1")
    def kread(b, ti):
        R = NXT if ti == 8 else CUR; ti %= 8
        return [f"ds_read_b128 {vr(K0[b],4)}, v{R[0]} offset:{ti*1024}",
                f"ds_read_b32 v{K1[b]}, v{R[1]} offset:{ti*128}"]
    def vread(b, ti):
        R = NXT if ti == 8 else CUR; ti %= 8
        return [f"ds_read_b128 {vr(VF[b],4)}, v{R[2]} offset:{ti*1280}",
                f"ds_read_b128 {vr(VF[b]+4,4)}, v{R[2]} offset:{ti*1280+640}"]
    def smfma(b, X):
        return [f"v_mfma_f32_32x32x16_bf16 {vr(SB[X],16)}, {vr(K0[b],4)}, {vr(Q0[X],4)}, 0",
                f"v_mfma_f32_32x32x16_bf16 {vr(SB[X],16)}, {vr(K1[b],4)}, {vr(Q1[X],4)}, {vr(SB[X],16)}"]
    def pv(b, X):
        return [f"v_mfma_f32_32x32x16_bf16 {vr(O[X],16)}, {vr(VF[b],4)}, {vr(PB[X],4)}, {vr(O[X],16)}",
                f"v_mfma_f32_32x32x16_bf16 {vr(O[X],16)}, {vr(VF[b]+4,4)}, {vr(PB[X]+4,4)}, {vr(O[X],16)}"]
    def setm(X, vmax):
        a(f"v_sub_f32 v{vmax}, 0, v{vmax}")
        a(f"v_cvt_pk_bf16_f32 v{vmax}, v{vmax}, 0")
        a(f"v_cndmask_b32 v{Q1[X]+1}, 0, v{vmax}, s[40:41]")
    def tilemax(X, dst, first):
        s = SB[X]
        if first:
            a(f"v_max3_f32 v{dst}, v{s}, v{s+1}, v{s+2}")
            for j in range(3, 15, 2): a(f"v_max3_f32 v{dst}, v{dst}, v{s+j}, v{s+j+1}")
            a(f"v_max_f32 v{dst}, v{dst}, v{s+15}")
        else:
            for j in range(0, 16, 2): a(f"v_max3_f32 v{dst}, v{dst}, v{s+j}, v{s+j+1}")
    for x in kread(0, 0) + vread(0, 0): a(x)
    a("s_waitcnt lgkmcnt(2)")
    for X in range(2):
        for x in smfma(0, X): a(x)
    for X in range(2):
        for i in range(16): a(f"v_mov_b32 v{O[X]+i}, 0")
    for i in range(8): a(f"v_mov_b32 v{PB[1]+i}, 0")
    for i in range(8): a(f"v_mov_b32 v{VF[1]+i}, 0")
    for X in range(2):
        tilemax(X, T, True)
        halfswap(T, T+1, T+2)
        a(f"v_max_f32 v{T}, v{T+1}, v{T+2}")
        a(f"v_add_f32 v{T}, 0x{f32bits(TOFF):08x}, v{T}")
        setm(X, T)
    a("s_nop 1")
    for x in smfma(0, 0): a(x)
    a("s_nop 15")

    def phase(X, mf, extra, waits):
        s = SB[X]; p = PB[X]
        seq = []
        for e in range(16):
            seq.append(f"v_exp_f32 v{s+e}, v{s+e}")
            if e % 2 == 1 and e >= 3: seq.append(f"v_cvt_pk_bf16_f32 v{p+(e-3)//2}, v{s+e-3}, v{s+e-2}")
        seq.append("NOP")
        seq.append(f"v_cvt_pk_bf16_f32 v{p+7}, v{s+14}, v{s+15}")
        pos = {2: 0, 6: 1, 9: 2, 13: 3}
        ex = list(extra)
        for i, x in enumerate(seq):
            if i in pos:
                k = pos[i]
                if k in waits: a(waits[k])
                a(mf[k])
            if x == "NOP":
                if ex:
                    for y in ex.pop(0): a(y)
                else: a("s_nop 0")
                continue
            a(x)
            if ex and i % 3 == 0 and i > 0:
                for y in ex.pop(0): a(y)
        for g in ex:
            for y in g: a(y)
    a("s_mov_b32 s50, 0")
    a(f"s_add_u32 s51, s35, {3*KCH}")
    a("s_mov_b32 s52, 8")
    L_loop = a.newlabel("aloop")
    a.label(L_loop)
    for t in range(8):
        b = t % 2; nb = 1 - b
        extra = []
        if t == 7:
            a("s_waitcnt vmcnt(5)")
            a("s_barrier")
        extra += [[x] for x in kread(nb, t+1)]
        if t == 2:
            extra += [[f"s_add_u32 s53, s50, {3*KCH}", f"s_cmp_ge_u32 s53, {4*KCH}"], ] if False else []
            extra += [[f"s_add_u32 s53, s50, {3*KCH}", f"s_sub_u32 s54, s53, {4*KCH}", f"s_cmp_ge_u32 s53, {4*KCH}", "s_cselect_b32 s53, s54, s53"],
                      [f"s_add_u32 s50, s50, {KCH}", f"s_cmp_ge_u32 s50, {4*KCH}", "s_cselect_b32 s50, 0, s50"],
                      ["s_add_u32 s53, s53, s35"]]
        if t == 3:
            extra += [[f"v_add_u32 v{y}, s50, v{x}"] for x, y in zip((vK0, vK1, vV), NXT)]
        phase(0, pv(nb, 1) + smfma(b, 1), extra, {})
        extra = [[x] for x in vread(nb, t+1)]
        if t == 7:
            extra += [["s_mov_b32 m0, s53", "s_nop 0", "buffer_load_dwordx4 v1, s[12:15], s51 offen lds"]]
            extra += [[f"buffer_load_dwordx4 v1, s[12:15], s51 offen offset:{j*1024} lds"] for j in range(1, 4)]
            extra += [["s_add_u32 m0, s53, 4096", "s_add_u32 s36, s51, 4096", "buffer_load_dwordx4 v1, s[12:15], s36 offen lds", f"s_add_u32 s51, s51, {KCH}"]]
        phase(1, pv(b, 0) + smfma(nb, 0), extra, {0: "s_waitcnt lgkmcnt(0)"})
    for x, y in zip(NXT, CUR): a(f"v_mov_b32 v{y}, v{x}")
    a("s_sub_u32 s52, s52, 1")
    a("s_cmp_lg_u32 s52, 0")
    a(f"s_cbranch_scc1 {L_loop}")
    a("s_waitcnt vmcnt(0) lgkmcnt(0)")
    a("s_nop 1")
    for x in pv(1, 1): a(x)
    stamp(a, 2)
    a("s_nop 15")
    a("s_nop 3")
    L_fin = a.newlabel("afin")
    a("s_mov_b32 s42, 0")
    a.label(L_fin)
    a(f"s_mov_b32 s44, 0x{f32bits(LTHRESH):08x}")
    for X in range(2):
        halfswap(O[X]+10, T+2*X, T+2*X+1)
    a(f"v_cmp_nlt_f32 vcc, v{T}, s44")
    a("s_mov_b64 s[46:47], vcc")
    a(f"v_cmp_nlt_f32 vcc, v{T+2}, s44")
    a("s_or_b64 vcc, vcc, s[46:47]")
    L_ok, L_fb = a.newlabel("aok"), a.newlabel("afb")
    a(f"s_cbranch_vccz {L_ok}")
    a("s_cmp_eq_u32 s42, 0")
    a(f"s_cbranch_scc1 {L_fb}")
    a.label(L_ok)
    for X in range(2):
        a(f"v_rcp_f32 v{T+2*X}, v{T+2*X}")
        a("s_nop 0")
        for i in range(10): a(f"v_mul_f32 v{O[X]+i}, v{T+2*X}, v{O[X]+i}")
        t0 = SB[X]
        for j in range(5): a(f"v_cvt_pk_bf16_f32 v{t0+j}, v{O[X]+2*j}, v{O[X]+2*j+1}")
        if X == 0:
            a("v_lshrrev_b32 v5, 4, v2")
            a("v_mul_u32_u24 v5, 4608, v5")
            a(f"v_and_b32 v{T+6}, 15, v0")
            a(f"v_lshl_add_u32 v5, v{T+6}, 4, v5")
            a("s_mul_i32 s43, s34, 36")
        a(f"v_lshl_add_u32 v{T+6}, v3, 2, s43")
        for j, dn in enumerate((0, 2, 8, 10, 16)):
            a(f"v_add_u32 v{T+7}, {dn + 18*X}, v{T+6}")
            a(f"v_lshrrev_b32 v{T+8}, 3, v{T+7}")
            a(f"v_and_b32 v{T+7}, 7, v{T+7}")
            a(f"v_lshl_add_u32 v{T+8}, v{T+8}, 8, v5")
            a(f"v_lshl_add_u32 v{T+8}, v{T+7}, 1, v{T+8}")
            if j == 4: a("s_and_saveexec_b64 s[46:47], s[40:41]")
            a(f"ds_write_b32 v{T+8}, v{t0+j}")
            if j == 4: a("s_mov_b64 exec, s[46:47]")
    a("s_waitcnt lgkmcnt(0)")
    a("s_barrier")
    a("s_lshr_b32 s45, s66, 2")
    a("s_mul_i32 s45, s45, 36864")
    a("s_and_b32 s43, s66, 3")
    a("s_mul_i32 s43, s43, 4608")
    a("s_add_u32 s45, s45, s43")
    Lsk = a.newlabel("ost")
    for k in range(3):
        if k == 2:
            a("s_cmp_lg_u32 s34, 0")
            a(f"s_cbranch_scc1 {Lsk}")
        a(f"s_lshl_b32 s43, s34, 10")
        a(f"s_add_u32 s43, s43, {k*4096}")
        a(f"v_add_u32 v{T}, s43, v1")
        a(f"ds_read_b128 {vr(SB[0],4)}, v{T}")
        a(f"v_cmp_le_u32 vcc, 4608, v{T}")
        a(f"v_add_u32 v{T+1}, {18432-4608}, v{T}")
        a("s_nop 0")
        a(f"v_cndmask_b32 v{T}, v{T}, v{T+1}, vcc")
        a("s_waitcnt lgkmcnt(0)")
        a(f"buffer_store_dwordx4 {vr(SB[0],4)}, v{T}, s[20:23], s45 offen sc1")
        a("s_nop 1")
    a.label(Lsk)
    stamp_flush(a, 3, 6, 34, 4, vtmp=T+6)
    a(f"s_branch {L_end}")
    a.label(L_fb)
    a("s_mov_b32 s42, 1")
    for X in range(2):
        a(f"v_mov_b32 v{Q1[X]+1}, 0")
        a(f"v_mov_b32 v{T+4+X}, 0x{f32bits(NEGBIG):08x}")
    def gl_offsets():
        a("s_lshr_b32 s46, s45, 3")
        a(f"s_mul_i32 s46, s46, {KCH}")
        a("s_and_b32 s49, s45, 7")
        a("s_lshl_b32 s47, s49, 7")
        a("s_add_u32 s47, s47, s46")
        a("s_mul_i32 s48, s49, 1280")
        a("s_add_u32 s48, s48, s46")
        a("s_lshl_b32 s49, s49, 10")
        a("s_add_u32 s46, s46, s49")
    a("s_mov_b32 s45, 0")
    L1 = a.newlabel("aml"); a.label(L1)
    gl_offsets()
    a(f"buffer_load_dwordx4 {vr(K0[0],4)}, v{vK0}, s[12:15], s46 offen")
    a(f"buffer_load_dword v{K1[0]}, v{vK1}, s[12:15], s47 offen")
    a("s_waitcnt vmcnt(0)")
    for X in range(2):
        for x in smfma(0, X): a(x)
    a("s_nop 15")
    a("s_nop 3")
    for X in range(2): tilemax(X, T+4+X, False)
    a("s_add_u32 s45, s45, 1")
    a("s_cmp_lt_u32 s45, 64")
    a(f"s_cbranch_scc1 {L1}")
    for X in range(2):
        halfswap(T+4+X, T, T+1)
        a(f"v_max_f32 v{T+4+X}, v{T}, v{T+1}")
        setm(X, T+4+X)
        for i in range(16): a(f"v_mov_b32 v{O[X]+i}, 0")
    a("s_mov_b32 s45, 0")
    L2 = a.newlabel("arl"); a.label(L2)
    gl_offsets()
    a(f"buffer_load_dwordx4 {vr(K0[0],4)}, v{vK0}, s[12:15], s46 offen")
    a(f"buffer_load_dword v{K1[0]}, v{vK1}, s[12:15], s47 offen")
    a(f"buffer_load_dwordx4 {vr(VF[0],4)}, v{vV}, s[12:15], s48 offen")
    a(f"buffer_load_dwordx4 {vr(VF[0]+4,4)}, v{vV}, s[12:15], s48 offen offset:640")
    a("s_waitcnt vmcnt(0)")
    for X in range(2):
        for x in smfma(0, X): a(x)
    a("s_nop 15")
    a("s_nop 3")
    for X in range(2):
        for e in range(16): a(f"v_exp_f32 v{SB[X]+e}, v{SB[X]+e}")
        a("s_nop 0")
        for j in range(8): a(f"v_cvt_pk_bf16_f32 v{PB[X]+j}, v{SB[X]+2*j}, v{SB[X]+2*j+1}")
        a("s_nop 1")
        for x in pv(0, X): a(x)
    a("s_add_u32 s45, s45, 1")
    a("s_cmp_lt_u32 s45, 64")
    a(f"s_cbranch_scc1 {L2}")
    a("s_nop 15")
    a("s_nop 3")
    a(f"s_branch {L_fin}")
```

```python
from common import *
import os, math, struct
import k3a
EXPF = os.environ.get('EXPF', '')
def f32bits(x): return struct.unpack("<I", struct.pack("<f", x))[0]

POLL_LABEL = []
def gen_oproj_body(a, L_end, job, s_id, NB=5, dyn=False, L_invalid=None, after_issue=None, extra_ops=0):
    NT = 32 if job == 1 else 5
    NCB = 10 if job == 3 else 9
    NTILE = 26 * NCB
    OPS = 9
    BP = 9216 if job == 3 else 4096
    WL = max(20480, NB*BP)
    a("s_load_dwordx2 s[6:7], s[0:1], 104")
    if job == 3:
        a("s_load_dwordx4 s[8:11], s[0:1], 0")
    else:
        a("s_load_dwordx2 s[10:11], s[0:1], 88")
        a(f"s_load_dwordx2 s[8:9], s[0:1], {80 if job == 1 else 32}")
    a("v_lshrrev_b32 v1, 6, v0")
    a("v_and_b32 v0, 63, v0")
    a("v_readfirstlane_b32 s34, v1")
    if True:
        a(f"s_and_b32 s35, s{s_id}, 7")
        a(f"s_lshr_b32 s36, s{s_id}, 3")
        a(f"s_mul_i32 s37, s35, {NTILE}")
        a(f"s_add_u32 s38, s37, {NTILE}")
        a("s_lshr_b32 s37, s37, 3")
        a("s_lshr_b32 s38, s38, 3")
        a("s_add_u32 s37, s37, s36")
        a("s_cmp_ge_u32 s37, s38")
        a(f"s_cbranch_scc1 {L_invalid or L_end}")
    a(f"s_mul_i32 s32, s37, {7282 if NCB == 9 else 6554}")
    a("s_lshr_b32 s32, s32, 16")
    a(f"s_mul_i32 s33, s32, {NCB}")
    a("s_sub_u32 s33, s37, s33")
    a("s_waitcnt lgkmcnt(0)")
    stamp(a, 0)
    a("s_movk_i32 s38, 1152")
    a("s_movk_i32 s35, 1152")
    a("s_lshl_b32 s43, s33, 7")
    a("s_mov_b32 s46, s43")
    if job == 1: make_srd(a, 12, 6, 16*MB, WS_CTX)
    elif job == 2: make_srd(a, 12, 6, 2048*1152, WS_OA)
    else: make_srd(a, 12, 8, SZ["A_x"])
    if job != 3:
        make_srd(a, 16, 8, SZ["B_wo"] if job == 1 else SZ["A_wo"])
        make_srd(a, 20, 10, SZ["out"])
    else:
        a(f"s_add_u32 s36, s6, {WS_WKV}")
        a("s_addc_u32 s37, s7, 0")
        a("s_cmp_lt_u32 s33, 9")
        a("s_cselect_b32 s16, s10, s36")
        a("s_cselect_b32 s17, s11, s37")
        a(f"s_mov_b32 s18, {576*128}")
        a(f"s_cselect_b32 s18, {SZ['A_wq']}, s18")
        a("s_mov_b32 s19, 0x00020000")
        a("s_movk_i32 s35, 128")
        a("s_cselect_b32 s35, 1152, s35")
        a("s_cselect_b32 s46, s46, 0")
        a(f"s_mov_b32 s36, {WS_KVA}")
        a(f"s_cselect_b32 s36, {WS_QA}, s36")
        a(f"s_mov_b32 s22, {KVA_SIZE}")
        a(f"s_cselect_b32 s22, {2048*1152}, s22")
        a("s_add_u32 s20, s6, s36")
        a("s_addc_u32 s21, s7, 0")
        a("s_mov_b32 s23, 0x00020000")
    a("v_lshrrev_b32 v8, 4, v0")
    if job == 1:
        a("v_lshlrev_b32 v9, 9, v8")
        a("v_and_b32 v11, 15, v0")
        a("v_lshl_add_u32 v2, v11, 4, v9")
    elif job == 2:
        a("v_lshlrev_b32 v2, 4, v0")
    else:
        a("v_lshrrev_b32 v9, 2, v0")
        a("v_mul_lo_u32 v9, v9, s38")
        a("v_and_b32 v11, 3, v0")
        a("v_lshl_add_u32 v2, v11, 4, v9")
    a("v_lshrrev_b32 v9, 3, v0")
    a("v_mul_lo_u32 v10, v9, s35")
    a("v_lshrrev_b32 v9, 1, v9")
    a("v_lshlrev_b32 v9, 1, v9")
    a("v_and_b32 v11, 7, v0")
    a("v_xor_b32 v9, v9, v11")
    a("v_lshl_add_u32 v3, v9, 4, v10")
    a(f"s_mul_i32 s39, s34, {WL}")
    if job == 1:
        a("s_mul_i32 s40, s32, 5")
        a("s_lshl_b32 s41, s34, 11")
        for rt in range(5):
            a(f"s_add_u32 s44, s40, {rt}")
            a("s_lshr_b32 s45, s44, 1")
            a("s_lshl_b32 s45, s45, 18")
            a("s_and_b32 s44, s44, 1")
            a("s_lshl_b32 s44, s44, 8")
            a("s_add_u32 s44, s44, s45")
            a(f"s_add_u32 s{52+rt}, s44, s41")
        astep = 8192
    elif job == 2:
        a(f"s_mul_i32 s40, s32, {5*18432}")
        a("s_lshl_b32 s41, s34, 10")
        a("s_add_u32 s40, s40, s41")
        for rt in range(5): a(f"s_add_u32 s{52+rt}, s40, {rt*18432}")
        astep = 4096
    else:
        a(f"s_mul_i32 s40, s32, {80*1152}")
        a("s_lshl_b32 s41, s34, 6")
        a("s_add_u32 s40, s40, s41")
        for rt in range(5): a(f"s_add_u32 s{52+rt}, s40, {rt*16*1152}")
        astep = 256
    a("s_lshl_b32 s47, s35, 3")
    a("s_lshl_b32 s48, s35, 5")
    a("s_mul_i32 s42, s34, s48")
    a("s_add_u32 s42, s42, s46")
    a("s_mul_i32 s48, s35, 104")
    WFS = [16, 32]; CT = 48
    def issue_groups(n):
        b = n % NB
        G = []
        for j in range(4):
            g = [f"s_add_u32 m0, s39, {b*BP + j*1024}", "s_nop 0",
                 f"buffer_load_dwordx4 v3, s[16:19], {'0' if 'now' in EXPF else 's42'} offen lds",
                 f"s_add_u32 s42, s42, s{47 if j < 3 else 48}"]
            G.append(g)
        for rt in range(5):
            if job == 3:
                G.append([f"s_add_u32 m0, s39, {b*BP + 4096 + rt*1024}", "s_nop 0",
                          f"buffer_load_dwordx4 v2, s[12:15], s{52+rt} offen lds",
                          f"s_add_u32 s{52+rt}, s{52+rt}, {astep}"])
            else:
                G.append([f"buffer_load_dwordx4 {vr(CT+20*b+4*rt,4)}, v2, s[12:15], {'0' if 'noc' in EXPF else f's{52+rt}'} offen{' sc1' if dyn else ''}",
                          f"s_add_u32 s{52+rt}, s{52+rt}, {astep}"])
        return G
    if dyn:
        assert NB >= NT
        GS = [issue_groups(n) for n in range(NT)]
        for G in GS[:4]:
            for g in G[:4]:
                for x in g: a(x)
        Lp, Lq = a.newlabel("poll"), a.newlabel("pdone")
        POLL_LABEL[:] = [Lp]
        a("s_cmp_lg_u32 s34, 0")
        a(f"s_cbranch_scc1 {Lq}")
        a("s_mul_i32 s44, s32, 80")
        a("s_lshr_b32 s45, s44, 5")
        a("s_add_u32 s44, s44, 79")
        a("s_lshr_b32 s44, s44, 5")
        a("s_min_u32 s44, s44, 63")
        a("v_and_b32 v9, 3, v0")
        a("v_add_u32 v9, s45, v9")
        a("v_min_u32 v9, s44, v9")
        a("v_lshlrev_b32 v9, 7, v9")
        a.label(Lp)
        a("buffer_load_dword v10, v9, s[60:63], 0 offen sc1")
        a("s_waitcnt vmcnt(0)")
        a("v_and_b32 v11, 0xff, v10")
        a("v_cmp_ne_u32 vcc, 4, v11")
        a(f"s_cbranch_vccz {Lq}")
        a("v_lshrrev_b32 v11, 16, v10")
        a("v_cmp_ne_u32 vcc, 15, v11")
        a("s_cbranch_vccnz L_k3_steal")
        a("s_sleep 16")
        a(f"s_branch {Lp}")
        a.label(Lq)
        a("v_mov_b32 v9, 0")
        a("v_mov_b32 v10, -1")
        a("s_cmp_lg_u32 s34, 0")
        a("s_cbranch_scc1 L_k3_sync")
        a("ds_write_b32 v9, v10 offset:16384")
        a("s_waitcnt lgkmcnt(0)")
        a.label("L_k3_sync")
        a("s_barrier")
        a("ds_read_b32 v10, v9 offset:16384")
        a("s_waitcnt vmcnt(0) lgkmcnt(0)")
        a("v_readfirstlane_b32 s66, v10")
        a("s_barrier")
        a("s_cmp_lg_u32 s66, -1")
        a("s_cbranch_scc1 L_k3_runsteal")
        for g in GS[4][:4]:
            for x in g: a(x)
        for G in GS:
            for g in G[4:]:
                for x in g: a(x)
    else:
        for n in range(min(NB-1, NT)):
            for g in issue_groups(n):
                for x in g: a(x)
        if after_issue: after_issue()
    a("v_lshrrev_b32 v10, 2, v0")
    a("v_and_b32 v10, 3, v10")
    a("v_and_b32 v11, 3, v0")
    if job == 1:
        a("v_lshrrev_b32 v9, 1, v8")
        a("v_lshlrev_b32 v9, 4, v9")
        a("v_and_b32 v15, 1, v8")
        a("v_lshl_add_u32 v9, v15, 2, v9")
        a("v_add_u32 v9, v9, v10")
        a("v_lshlrev_b32 v9, 7, v9")
        a("v_lshl_add_u32 v9, v11, 3, v9")
        a("v_add_u32 v9, s39, v9")
        a("v_lshrrev_b32 v1, 1, v10")
        a("v_lshl_add_u32 v1, v15, 1, v1")
        a("v_lshl_add_u32 v4, v1, 5, v9")
    else:
        a("v_lshl_add_u32 v9, v8, 3, v10")
        a("v_lshlrev_b32 v9, 7, v9")
        a("v_lshl_add_u32 v9, v11, 3, v9")
        a("v_add_u32 v9, s39, v9")
        a("v_lshrrev_b32 v1, 1, v10")
        a("v_lshl_add_u32 v4, v1, 5, v9")
    for ct in range(1, 4): a(f"v_xor_b32 v{4+ct}, {ct*32}, v4")
    if job == 3:
        a("v_and_b32 v9, 15, v0")
        a("v_lshlrev_b32 v9, 6, v9")
        a("v_lshl_add_u32 v9, v8, 4, v9")
        a("v_add_u32 v14, s39, v9")
    for i in range(80): a(f"v_accvgpr_write_b32 a{i}, 0")
    NRD = 13 if job == 3 else 8
    def actreg(n, rt):
        return vr(CT+20*(n % 2)+4*rt,4) if job == 3 else vr(CT+20*(n % NB)+4*rt,4)
    def treads(n):
        b = n % NB; WF = WFS[n % 2]
        for ct in range(4):
            for rd in range(2):
                if job == 1: a(f"ds_read_b64_tr_b16 {vr(WF+4*ct+2*rd,2)}, v{4+ct} offset:{b*BP + rd*1024}")
                else:        a(f"ds_read_b64_tr_b16 {vr(WF+4*ct+2*rd,2)}, v{4+(ct^(2*rd))} offset:{b*BP + rd*512}")
        if job == 3:
            for rt in range(5): a(f"ds_read_b128 {actreg(n, rt)}, v14 offset:{b*BP + 4096 + rt*1024}")
    def mainloop(swapV):
        if not dyn: a(f"s_waitcnt vmcnt({OPS*(min(NB-1,NT)-1) + extra_ops})")
        treads(0)
        for n in range(NT):
            b = n % NB; WF = WFS[n % 2]
            last_issued = min(n + NB - 2, NT - 1)
            if n + 1 < NT:
                if not dyn: a(f"s_waitcnt vmcnt({OPS*(last_issued-(n+1)) + (extra_ops if n + 1 < NB - 1 else 0)})")
                treads(n + 1)
                a(f"s_waitcnt lgkmcnt({NRD})")
            else:
                a("s_waitcnt lgkmcnt(0)")
            if dyn: a(f"s_waitcnt vmcnt({5*(NT-1-n)})")
            G = issue_groups(n + NB - 1) if (n + NB - 1 < NT and not dyn) else []
            k = 0
            Lsk5 = None
            if job != 1 and n == NT - 1:
                Lsk5 = a.newlabel("sk5")
                a("s_cmp_ge_u32 s34, 2")
                a(f"s_cbranch_scc1 {Lsk5}")
            for ct in range(4):
                for rt in range(5):
                    acc = ar(4*(4*rt+ct), 4)
                    W_ = vr(WF+4*ct,4); A_ = actreg(n, rt)
                    if swapV and ct >= 2: a(f"v_mfma_f32_16x16x32_bf16 {acc}, {A_}, {W_}, {acc}")
                    else: a(f"v_mfma_f32_16x16x32_bf16 {acc}, {W_}, {A_}, {acc}")
                    if k % 2 == 1 and G:
                        for x in G.pop(0): a(x)
                    k += 1
            if Lsk5: a.label(Lsk5)
    R = 16
    def reduce():
        stamp(a, 1)
        a("s_nop 15")
        a("v_lshlrev_b32 v1, 4, v0")
        a("v_add_u32 v13, s39, v1")
        for t in range(20):
            a(f"ds_write_b128 v13, {ar(4*t,4)} offset:{t*1024}")
        a("s_waitcnt lgkmcnt(0)")
        a("s_barrier")
        a("s_lshl_b32 s44, s34, 10")
        a("v_add_u32 v12, s44, v1")
        a(f"v_add_u32 v13, {2*WL}, v12")
        for rt in range(5):
            for wv in range(4):
                a(f"ds_read_b128 {vr(R+16*rt+4*wv,4)}, v{12+wv//2} offset:{(wv%2)*WL + rt*4096}")
        a("s_waitcnt lgkmcnt(0)")
        for rt in range(5):
            b = R + 16*rt
            for i in range(4):
                a(f"v_add_f32 v{b+i}, v{b+i}, v{b+4+i}")
                a(f"v_add_f32 v{b+8+i}, v{b+8+i}, v{b+12+i}")
                a(f"v_add_f32 v{b+i}, v{b+i}, v{b+8+i}")
    def rowmajor_store(pitch, coff, scale):
        a("s_mul_i32 s44, s32, 80")
        a("v_and_b32 v9, 15, v0")
        a("v_add_u32 v9, s44, v9")
        a(f"s_movk_i32 s45, {pitch}")
        a("v_mul_lo_u32 v9, v9, s45")
        a("v_lshl_add_u32 v9, v8, 3, v9")
        a("s_lshl_b32 s44, s34, 5")
        a("s_add_u32 s43, s43, s44")
        if scale: a(f"s_mov_b32 s45, 0x{f32bits(scale):08x}")
        for rt in range(5):
            b = R + 16*rt
            if scale:
                for i in range(4): a(f"v_mul_f32 v{b+i}, s45, v{b+i}")
            t = 100 + 2*rt
            a(f"v_cvt_pk_bf16_f32 v{t}, v{b}, v{b+1}")
            a(f"v_cvt_pk_bf16_f32 v{t+1}, v{b+2}, v{b+3}")
            a(f"s_add_u32 s44, s43, {rt*16*pitch + coff}")
            a(f"buffer_store_dwordx2 {vr(t,2)}, v9, s[20:23], s44 offen")
    if job != 3:
        mainloop(False); reduce()
        rowmajor_store(2304, 1152 if job == 1 else 0, None)
        stamp_flush(a, 2, 6, 34, 4, vtmp=1)
        a(f"s_branch {L_end}")
        return
    Lkv = a.newlabel("kv")
    a("s_cmp_ge_u32 s33, 9")
    a(f"s_cbranch_scc1 {Lkv}")
    mainloop(False); reduce()
    rowmajor_store(1152, 0, math.log2(math.e) / math.sqrt(18.0))
    stamp_flush(a, 2, 6, 34, 4, vtmp=1)
    a(f"s_branch {L_end}")
    a.label(Lkv)
    mainloop(True); reduce()
    a("v_and_b32 v9, 15, v0")
    a("v_and_b32 v10, 1, v8")
    a("v_lshrrev_b32 v11, 1, v8")
    a("v_lshlrev_b32 v11, 3, v11")
    a("v_lshl_add_u32 v12, v10, 5, v9")
    a("v_lshl_add_u32 v12, v12, 4, v11")
    a("v_lshlrev_b32 v13, 2, v9")
    a("v_mul_u32_u24 v14, 320, v10")
    a("v_lshl_add_u32 v14, v9, 4, v14")
    a("v_add_u32 v14, v14, v11")
    for rt in range(5):
        b = R + 16*rt; t = 100 + 2*rt
        a(f"v_cvt_pk_bf16_f32 v{t}, v{b}, v{b+1}")
        a(f"v_cvt_pk_bf16_f32 v{t+1}, v{b+2}, v{b+3}")
    def soffs(rt, mul_tin, mul_kh, base):
        a("s_mul_i32 s44, s32, 5")
        a(f"s_add_u32 s44, s44, {rt}")
        a("s_lshr_b32 s45, s44, 4")
        a(f"s_mul_i32 s45, s45, {KCH}")
        a("s_lshr_b32 s46, s44, 1")
        a("s_and_b32 s46, s46, 7")
        a(f"s_mul_i32 s46, s46, {mul_tin}")
        a("s_add_u32 s45, s45, s46")
        a("s_and_b32 s44, s44, 1")
        a(f"s_mul_i32 s44, s44, {mul_kh}")
        a("s_add_u32 s44, s44, s45")
        if base: a(f"s_add_u32 s44, s44, {base}")
    Lw = [a.newlabel("w") for _ in range(4)]
    for w in range(1, 4):
        a(f"s_cmp_eq_u32 s34, {w}")
        a(f"s_cbranch_scc1 {Lw[w]}")
    for rt in range(5):
        soffs(rt, 1024, 256, 0)
        a(f"buffer_store_dwordx2 {vr(100+2*rt,2)}, v12, s[20:23], s44 offen")
    a(f"s_branch {L_end}")
    a.label(Lw[1])
    a("v_cmp_gt_u32 vcc, 16, v0")
    a("s_and_saveexec_b64 s[50:51], vcc")
    for rt in range(5):
        soffs(rt, 128, 64, KA1_OFF)
        a(f"buffer_store_dword v{100+2*rt}, v13, s[20:23], s44 offen")
    a(f"s_branch {L_end}")
    a.label(Lw[2])
    for rt in range(5):
        soffs(rt, 1280, 640, VA_OFF)
        a(f"buffer_store_dwordx2 {vr(100+2*rt,2)}, v14, s[20:23], s44 offen")
    a(f"s_branch {L_end}")
    a.label(Lw[3])
    a("v_cmp_eq_u32 vcc, 2, v9")
    a("v_mov_b32 v15, 0x3f803f80")
    a("s_nop 1")
    for j in range(10): a(f"v_cndmask_b32 v{100+j}, v{100+j}, v15, vcc")
    a("v_cmp_eq_u32 vcc, 3, v9")
    a("v_mov_b32 v15, 0")
    a("s_nop 1")
    for j in range(10): a(f"v_cndmask_b32 v{100+j}, v{100+j}, v15, vcc")
    a("v_cmp_gt_u32 vcc, 4, v9")
    a("s_and_saveexec_b64 s[50:51], vcc")
    for rt in range(5):
        soffs(rt, 1280, 640, VA_OFF + 256)
        a(f"buffer_store_dwordx2 {vr(100+2*rt,2)}, v14, s[20:23], s44 offen")
    a(f"s_branch {L_end}")

def dbgstamp(a, k):
    if not os.environ.get("DBG3"): return
    a("s_memrealtime s[66:67]")
    a("s_load_dwordx2 s[68:69], s[0:1], 104")
    a("s_waitcnt lgkmcnt(0)")
    make_srd(a, 72, 68, 16*MB, WS_PROF)
    a("s_lshl_b32 s70, s2, 2")
    a("s_add_u32 s70, s70, s34")
    a("s_lshl_b32 s70, s70, 6")
    a("v_mov_b32 v146, 0")
    a("v_mov_b32 v147, s66")
    a(f"buffer_store_dword v147, v146, s[72:75], s70 offen offset:{4*k}")

def gen_k3(a):
    name = "k3_kernel"
    kernel_header(a, name)
    L_end = "L_k3_end"
    a("s_cmp_ge_u32 s2, 496")
    a(f"s_cbranch_scc1 {L_end}")
    a("s_load_dwordx2 s[58:59], s[0:1], 104")
    a("s_waitcnt lgkmcnt(0)")
    make_srd(a, 60, 58, 8192, WS_FLAG)
    a("s_cmp_ge_u32 s2, 256")
    a("s_cbranch_scc1 L_k3_o")
    if os.environ.get("DROPA"):
        a(f"s_and_b32 s3, s2, {os.environ['DROPA']}")
        a("s_cmp_eq_u32 s3, 0")
        a(f"s_cbranch_scc1 {L_end}")
    a("s_mov_b32 s66, s2")
    a("s_mov_b32 s67, 0")
    a("v_mov_b32 v147, 0")
    a("v_mov_b32 v4, 0")
    a("s_lshr_b32 s3, s66, 2")
    a("s_lshl_b32 s3, s3, 7")
    a("s_and_b32 s4, s66, 3")
    a("s_lshl_b32 s68, 0x10000, s4")
    a("v_cmp_eq_u32 vcc, 0, v0")
    a("s_and_saveexec_b64 s[64:65], vcc")
    a("s_cbranch_execz L_k3_c1")
    a("v_mov_b32 v147, s68")
    a("buffer_atomic_or v147, v4, s[60:63], s3 offen sc0")
    a.label("L_k3_c1")
    a("s_mov_b64 exec, s[64:65]")
    a.label("L_k3_abody")
    k3a.gen_k3a_body(a, "L_k3_adone", L_claimed=L_end)
    a.label("L_k3_adone")
    a("s_waitcnt vmcnt(0)")
    a("s_barrier")
    a("s_cmp_lg_u32 s34, 0")
    a("s_cbranch_scc1 L_k3_a2")
    a("s_lshr_b32 s3, s66, 2")
    a("s_lshl_b32 s3, s3, 7")
    a("v_mov_b32 v2, 0")
    a("v_mov_b32 v3, 1")
    a("v_cmp_eq_u32 vcc, 0, v0")
    a("s_and_saveexec_b64 s[64:65], vcc")
    a("buffer_atomic_add v3, v2, s[60:63], s3 offen")
    a("s_mov_b64 exec, s[64:65]")
    a.label("L_k3_a2")
    a("s_cmp_eq_u32 s67, 0")
    a(f"s_cbranch_scc1 {L_end}")
    a("s_setprio 0")
    a("s_branch L_k3_next")
    a.label("L_k3_o")
    a("s_sub_u32 s3, s2, 256")
    gen_oproj_body(a, "L_k3_next", 1, 3, L_invalid=L_end)
    a.label("L_k3_next")
    a("s_mov_b64 exec, -1")
    a("s_waitcnt lgkmcnt(0)")
    a("s_barrier")
    a("s_sub_u32 s3, s2, 256")
    a("v_lshl_add_u32 v0, s34, 6, v0")
    import common
    sv = common.PROF; common.PROF = False; globals()["PROF"] = False
    gen_oproj_body(a, L_end, 2, 3, NB=5, dyn=True, L_invalid=L_end)
    common.PROF = sv; globals()["PROF"] = sv
    a.label("L_k3_steal")
    a("s_ff1_i32_b64 s68, vcc")
    a("s_nop 3")
    a("v_readlane_b32 s69, v10, s68")
    a("v_readlane_b32 s70, v9, s68")
    a("s_lshr_b32 s69, s69, 16")
    a("s_not_b32 s69, s69")
    a("s_and_b32 s69, s69, 15")
    a("s_ff1_i32_b32 s69, s69")
    a("s_lshl_b32 s71, 0x10000, s69")
    a("v_mov_b32 v11, s71")
    a("v_mov_b32 v12, 0")
    a("v_cmp_eq_u32 vcc, 0, v0")
    a("s_and_saveexec_b64 s[64:65], vcc")
    a("buffer_atomic_or v11, v12, s[60:63], s70 offen sc0")
    a("s_waitcnt vmcnt(0)")
    a("s_mov_b64 exec, s[64:65]")
    a("v_readfirstlane_b32 s72, v11")
    a("s_and_b32 s72, s72, s71")
    a("s_cmp_lg_u32 s72, 0")
    a(f"s_cbranch_scc1 {POLL_LABEL[0]}")
    a("s_lshr_b32 s70, s70, 5")
    a("s_add_u32 s70, s70, s69")
    a("v_mov_b32 v9, 0")
    a("v_mov_b32 v10, s70")
    a("ds_write_b32 v9, v10 offset:16384")
    a("s_waitcnt lgkmcnt(0)")
    a("s_branch L_k3_sync")
    a.label("L_k3_runsteal")
    a("s_mov_b32 s67, 1")
    a("v_mov_b32 v147, 0")
    a("s_mov_b32 s68, 0")
    a("v_lshl_add_u32 v0, s34, 6, v0")
    a("s_branch L_k3_abody")
    a.label(L_end)
    a("s_endpgm")
    return name, kernel_desc(name, 148, 80), "grid=(496,1,1) block=(256,1,1) lds=81920"
```

```python
import sys, os
from common import *
import k1, k2b, k3a, k4, g576, k12

def main(out):
    a = Asm()
    kernels = []
    import common
    pk = os.environ.get("PROF", "")
    def g(name, f):
        on = (pk == name)
        common.PROF = on
        for m in (k1, k2b, k3a, k4, g576, k12): m.PROF = on
        kernels.append(f(a))
    if os.environ.get("SPLIT12"):
        g("k1", k1.gen_k1)
        g("k2b", k2b.gen_k2b)
    else:
        g("k12", k12.gen_k2b)
    g("k3", k4.gen_k3)
    if os.environ.get("TL"):
        txt = []
        k = -1
        def st(k, slot):
            return [f"    s_load_dwordx2 s[4:5], s[0:1], 104", "    s_memrealtime s[6:7]", "    s_waitcnt lgkmcnt(0)",
                    f"    s_add_u32 s8, s4, {WS_PROF + k*65536*4}", "    s_addc_u32 s9, s5, 0", "    s_mov_b32 s10, 0x40000", "    s_mov_b32 s11, 0x00020000",
                    "    s_lshl_b32 s12, s2, 3",
                    "    s_mov_b64 exec, 1", "    v_mov_b32 v147, s6", "    v_mov_b32 v146, 0",
                    f"    buffer_store_dword v147, v146, s[8:11], s12 offen offset:{slot*4}", "    s_mov_b64 exec, -1"]
        for l in a.lines:
            if l.endswith("_kernel:"):
                k += 1; txt.append(l); txt += st(k, 0); continue
            if l.strip() == "s_endpgm": txt += st(k, 1)
            txt.append(l)
        a.lines = txt
    hdr = open("cdna_kernels/" + KNAME + ".s.ref").read().split("; Override launch")[0]
    s = hdr
    for name, desc, launch in kernels:
        s += f"; @launch kernel={name} {launch}\n"
    s += '.amdgcn_target "amdgcn-amd-amdhsa--gfx950"\n.text\n'
    s += a.text()
    s += '.section .rodata,"a"\n'
    for name, desc, launch in kernels:
        s += desc
    open(out, "w").write(s)

if __name__ == "__main__":
    main(sys.argv[1] if len(sys.argv) > 1 else "cdna_kernels/" + KNAME + ".s")
```

```python
from common import *
import os, math, struct
import k3a
EXPF = os.environ.get('EXPF', '')
def f32bits(x): return struct.unpack("<I", struct.pack("<f", x))[0]

POLL_LABEL = []
def gen_oproj_body(a, L_end, job, s_id, NB=5, dyn=False, L_invalid=None, after_issue=None, extra_ops=0):
    NT = 32 if job == 1 else 5
    NCB = 10 if job == 3 else 9
    NTILE = 26 * NCB
    OPS = 9
    BP = 9216 if job == 3 else 4096
    WL = max(20480, NB*BP)
    a("s_load_dwordx2 s[6:7], s[0:1], 104")
    if job == 3:
        a("s_load_dwordx4 s[8:11], s[0:1], 0")
    else:
        a("s_load_dwordx2 s[10:11], s[0:1], 88")
        a(f"s_load_dwordx2 s[8:9], s[0:1], {80 if job == 1 else 32}")
    a("v_lshrrev_b32 v1, 6, v0")
    a("v_and_b32 v0, 63, v0")
    a("v_readfirstlane_b32 s34, v1")
    if True:
        a(f"s_and_b32 s35, s{s_id}, 7")
        a(f"s_lshr_b32 s36, s{s_id}, 3")
        a(f"s_mul_i32 s37, s35, {NTILE}")
        a(f"s_add_u32 s38, s37, {NTILE}")
        a("s_lshr_b32 s37, s37, 3")
        a("s_lshr_b32 s38, s38, 3")
        a("s_add_u32 s37, s37, s36")
        a("s_cmp_ge_u32 s37, s38")
        a(f"s_cbranch_scc1 {L_invalid or L_end}")
    a(f"s_mul_i32 s32, s37, {7282 if NCB == 9 else 6554}")
    a("s_lshr_b32 s32, s32, 16")
    a(f"s_mul_i32 s33, s32, {NCB}")
    a("s_sub_u32 s33, s37, s33")
    a("s_waitcnt lgkmcnt(0)")
    stamp(a, 0)
    a("s_movk_i32 s38, 1152")
    a("s_movk_i32 s35, 1152")
    a("s_lshl_b32 s43, s33, 7")
    a("s_mov_b32 s46, s43")
    if job == 1: make_srd(a, 12, 6, 16*MB, WS_CTX)
    elif job == 2: make_srd(a, 12, 6, 2048*1152, WS_OA)
    else: make_srd(a, 12, 8, SZ["A_x"])
    if job != 3:
        make_srd(a, 16, 8, SZ["B_wo"] if job == 1 else SZ["A_wo"])
        make_srd(a, 20, 10, SZ["out"])
    else:
        a(f"s_add_u32 s36, s6, {WS_WKV}")
        a("s_addc_u32 s37, s7, 0")
        a("s_cmp_lt_u32 s33, 9")
        a("s_cselect_b32 s16, s10, s36")
        a("s_cselect_b32 s17, s11, s37")
        a(f"s_mov_b32 s18, {576*128}")
        a(f"s_cselect_b32 s18, {SZ['A_wq']}, s18")
        a("s_mov_b32 s19, 0x00020000")
        a("s_movk_i32 s35, 128")
        a("s_cselect_b32 s35, 1152, s35")
        a("s_cselect_b32 s46, s46, 0")
        a(f"s_mov_b32 s36, {WS_KVA}")
        a(f"s_cselect_b32 s36, {WS_QA}, s36")
        a(f"s_mov_b32 s22, {KVA_SIZE}")
        a(f"s_cselect_b32 s22, {2048*1152}, s22")
        a("s_add_u32 s20, s6, s36")
        a("s_addc_u32 s21, s7, 0")
        a("s_mov_b32 s23, 0x00020000")
    a("v_lshrrev_b32 v8, 4, v0")
    if job == 1:
        a("v_lshlrev_b32 v9, 9, v8")
        a("v_and_b32 v11, 15, v0")
        a("v_lshl_add_u32 v2, v11, 4, v9")
    elif job == 2:
        a("v_lshlrev_b32 v2, 4, v0")
    else:
        a("v_lshrrev_b32 v9, 2, v0")
        a("v_mul_lo_u32 v9, v9, s38")
        a("v_and_b32 v11, 3, v0")
        a("v_lshl_add_u32 v2, v11, 4, v9")
    a("v_lshrrev_b32 v9, 3, v0")
    a("v_mul_lo_u32 v10, v9, s35")
    a("v_lshrrev_b32 v9, 1, v9")
    a("v_lshlrev_b32 v9, 1, v9")
    a("v_and_b32 v11, 7, v0")
    a("v_xor_b32 v9, v9, v11")
    a("v_lshl_add_u32 v3, v9, 4, v10")
    a(f"s_mul_i32 s39, s34, {WL}")
    if job == 1:
        a("s_mul_i32 s40, s32, 5")
        a("s_lshl_b32 s41, s34, 11")
        for rt in range(5):
            a(f"s_add_u32 s44, s40, {rt}")
            a("s_lshr_b32 s45, s44, 1")
            a("s_lshl_b32 s45, s45, 18")
            a("s_and_b32 s44, s44, 1")
            a("s_lshl_b32 s44, s44, 8")
            a("s_add_u32 s44, s44, s45")
            a(f"s_add_u32 s{52+rt}, s44, s41")
        astep = 8192
    elif job == 2:
        a(f"s_mul_i32 s40, s32, {5*18432}")
        a("s_lshl_b32 s41, s34, 10")
        a("s_add_u32 s40, s40, s41")
        for rt in range(5): a(f"s_add_u32 s{52+rt}, s40, {rt*18432}")
        astep = 4096
    else:
        a(f"s_mul_i32 s40, s32, {80*1152}")
        a("s_lshl_b32 s41, s34, 6")
        a("s_add_u32 s40, s40, s41")
        for rt in range(5): a(f"s_add_u32 s{52+rt}, s40, {rt*16*1152}")
        astep = 256
    a("s_lshl_b32 s47, s35, 3")
    a("s_lshl_b32 s48, s35, 5")
    a("s_mul_i32 s42, s34, s48")
    a("s_add_u32 s42, s42, s46")
    a("s_mul_i32 s48, s35, 104")
    WFS = [16, 32]; CT = 48
    def issue_groups(n):
        b = n % NB
        G = []
        for j in range(4):
            g = [f"s_add_u32 m0, s39, {b*BP + j*1024}", "s_nop 0",
                 f"buffer_load_dwordx4 v3, s[16:19], {'0' if 'now' in EXPF else 's42'} offen lds",
                 f"s_add_u32 s42, s42, s{47 if j < 3 else 48}"]
            G.append(g)
        for rt in range(5):
            if job == 3:
                G.append([f"s_add_u32 m0, s39, {b*BP + 4096 + rt*1024}", "s_nop 0",
                          f"buffer_load_dwordx4 v2, s[12:15], s{52+rt} offen lds",
                          f"s_add_u32 s{52+rt}, s{52+rt}, {astep}"])
            else:
                G.append([f"buffer_load_dwordx4 {vr(CT+20*b+4*rt,4)}, v2, s[12:15], {'0' if 'noc' in EXPF else f's{52+rt}'} offen{' sc1' if dyn else ''}",
                          f"s_add_u32 s{52+rt}, s{52+rt}, {astep}"])
        return G
    if dyn:
        assert NB >= NT
        GS = [issue_groups(n) for n in range(NT)]
        for G in GS[:4]:
            for g in G[:4]:
                for x in g: a(x)
        Lp, Lq = a.newlabel("poll"), a.newlabel("pdone")
        POLL_LABEL[:] = [Lp]
        a("s_cmp_lg_u32 s34, 0")
        a(f"s_cbranch_scc1 {Lq}")
        a("s_mul_i32 s44, s32, 80")
        a("s_lshr_b32 s45, s44, 5")
        a("s_add_u32 s44, s44, 79")
        a("s_lshr_b32 s44, s44, 5")
        a("s_min_u32 s44, s44, 63")
        a("v_and_b32 v9, 3, v0")
        a("v_add_u32 v9, s45, v9")
        a("v_min_u32 v9, s44, v9")
        a("v_lshlrev_b32 v9, 7, v9")
        a.label(Lp)
        a("buffer_load_dword v10, v9, s[60:63], 0 offen sc1")
        a("s_waitcnt vmcnt(0)")
        a("v_and_b32 v11, 0xff, v10")
        a("v_cmp_ne_u32 vcc, 4, v11")
        a(f"s_cbranch_vccz {Lq}")
        a("v_lshrrev_b32 v11, 16, v10")
        a("v_cmp_ne_u32 vcc, 15, v11")
        a("s_cbranch_vccnz L_k3_steal")
        a(f"s_sleep {os.environ.get('SL3', '4')}")
        a(f"s_branch {Lp}")
        a.label(Lq)
        a("v_mov_b32 v9, 0")
        a("v_mov_b32 v10, -1")
        a("s_cmp_lg_u32 s34, 0")
        a("s_cbranch_scc1 L_k3_sync")
        a("ds_write_b32 v9, v10 offset:16384")
        a("s_waitcnt lgkmcnt(0)")
        a.label("L_k3_sync")
        a("s_barrier")
        a("ds_read_b32 v10, v9 offset:16384")
        a("s_waitcnt vmcnt(0) lgkmcnt(0)")
        a("v_readfirstlane_b32 s66, v10")
        a("s_barrier")
        a("s_cmp_lg_u32 s66, -1")
        a("s_cbranch_scc1 L_k3_runsteal")
        dbgstamp(a, 2)
        for g in GS[4][:4]:
            for x in g: a(x)
        for G in GS:
            for g in G[4:]:
                for x in g: a(x)
    else:
        for n in range(min(NB-1, NT)):
            for g in issue_groups(n):
                for x in g: a(x)
        if after_issue: after_issue()
    a("v_lshrrev_b32 v10, 2, v0")
    a("v_and_b32 v10, 3, v10")
    a("v_and_b32 v11, 3, v0")
    if job == 1:
        a("v_lshrrev_b32 v9, 1, v8")
        a("v_lshlrev_b32 v9, 4, v9")
        a("v_and_b32 v15, 1, v8")
        a("v_lshl_add_u32 v9, v15, 2, v9")
        a("v_add_u32 v9, v9, v10")
        a("v_lshlrev_b32 v9, 7, v9")
        a("v_lshl_add_u32 v9, v11, 3, v9")
        a("v_add_u32 v9, s39, v9")
        a("v_lshrrev_b32 v1, 1, v10")
        a("v_lshl_add_u32 v1, v15, 1, v1")
        a("v_lshl_add_u32 v4, v1, 5, v9")
    else:
        a("v_lshl_add_u32 v9, v8, 3, v10")
        a("v_lshlrev_b32 v9, 7, v9")
        a("v_lshl_add_u32 v9, v11, 3, v9")
        a("v_add_u32 v9, s39, v9")
        a("v_lshrrev_b32 v1, 1, v10")
        a("v_lshl_add_u32 v4, v1, 5, v9")
    for ct in range(1, 4): a(f"v_xor_b32 v{4+ct}, {ct*32}, v4")
    if job == 3:
        a("v_and_b32 v9, 15, v0")
        a("v_lshlrev_b32 v9, 6, v9")
        a("v_lshl_add_u32 v9, v8, 4, v9")
        a("v_add_u32 v14, s39, v9")
    for i in range(80): a(f"v_accvgpr_write_b32 a{i}, 0")
    NRD = 13 if job == 3 else 8
    def actreg(n, rt):
        return vr(CT+20*(n % 2)+4*rt,4) if job == 3 else vr(CT+20*(n % NB)+4*rt,4)
    def treads(n):
        b = n % NB; WF = WFS[n % 2]
        for ct in range(4):
            for rd in range(2):
                if job == 1: a(f"ds_read_b64_tr_b16 {vr(WF+4*ct+2*rd,2)}, v{4+ct} offset:{b*BP + rd*1024}")
                else:        a(f"ds_read_b64_tr_b16 {vr(WF+4*ct+2*rd,2)}, v{4+(ct^(2*rd))} offset:{b*BP + rd*512}")
        if job == 3:
            for rt in range(5): a(f"ds_read_b128 {actreg(n, rt)}, v14 offset:{b*BP + 4096 + rt*1024}")
    def mainloop(swapV):
        if not dyn: a(f"s_waitcnt vmcnt({OPS*(min(NB-1,NT)-1) + extra_ops})")
        treads(0)
        for n in range(NT):
            b = n % NB; WF = WFS[n % 2]
            last_issued = min(n + NB - 2, NT - 1)
            if n + 1 < NT:
                if not dyn: a(f"s_waitcnt vmcnt({OPS*(last_issued-(n+1)) + (extra_ops if n + 1 < NB - 1 else 0)})")
                treads(n + 1)
                a(f"s_waitcnt lgkmcnt({NRD})")
            else:
                a("s_waitcnt lgkmcnt(0)")
            if dyn: a(f"s_waitcnt vmcnt({5*(NT-1-n)})")
            G = issue_groups(n + NB - 1) if (n + NB - 1 < NT and not dyn) else []
            k = 0
            Lsk5 = None
            if job != 1 and n == NT - 1:
                Lsk5 = a.newlabel("sk5")
                a("s_cmp_ge_u32 s34, 2")
                a(f"s_cbranch_scc1 {Lsk5}")
            for ct in range(4):
                for rt in range(5):
                    acc = ar(4*(4*rt+ct), 4)
                    W_ = vr(WF+4*ct,4); A_ = actreg(n, rt)
                    if swapV and ct >= 2: a(f"v_mfma_f32_16x16x32_bf16 {acc}, {A_}, {W_}, {acc}")
                    else: a(f"v_mfma_f32_16x16x32_bf16 {acc}, {W_}, {A_}, {acc}")
                    if k % 2 == 1 and G:
                        for x in G.pop(0): a(x)
                    k += 1
            if Lsk5: a.label(Lsk5)
    R = 16
    def reduce():
        stamp(a, 1)
        if dyn: dbgstamp(a, 3)
        a("s_nop 15")
        a("v_lshlrev_b32 v1, 4, v0")
        a("v_add_u32 v13, s39, v1")
        for t in range(20):
            a(f"ds_write_b128 v13, {ar(4*t,4)} offset:{t*1024}")
        a("s_waitcnt lgkmcnt(0)")
        a("s_barrier")
        a("s_lshl_b32 s44, s34, 10")
        a("v_add_u32 v12, s44, v1")
        a(f"v_add_u32 v13, {2*WL}, v12")
        for rt in range(5):
            for wv in range(4):
                a(f"ds_read_b128 {vr(R+16*rt+4*wv,4)}, v{12+wv//2} offset:{(wv%2)*WL + rt*4096}")
        a("s_waitcnt lgkmcnt(0)")
        for rt in range(5):
            b = R + 16*rt
            for i in range(4):
                a(f"v_add_f32 v{b+i}, v{b+i}, v{b+4+i}")
                a(f"v_add_f32 v{b+8+i}, v{b+8+i}, v{b+12+i}")
                a(f"v_add_f32 v{b+i}, v{b+i}, v{b+8+i}")
    def rowmajor_store(pitch, coff, scale):
        a("s_mul_i32 s44, s32, 80")
        a("v_and_b32 v9, 15, v0")
        a("v_add_u32 v9, s44, v9")
        a(f"s_movk_i32 s45, {pitch}")
        a("v_mul_lo_u32 v9, v9, s45")
        a("v_lshl_add_u32 v9, v8, 3, v9")
        a("s_lshl_b32 s44, s34, 5")
        a("s_add_u32 s43, s43, s44")
        if scale: a(f"s_mov_b32 s45, 0x{f32bits(scale):08x}")
        for rt in range(5):
            b = R + 16*rt
            if scale:
                for i in range(4): a(f"v_mul_f32 v{b+i}, s45, v{b+i}")
            t = 100 + 2*rt
            a(f"v_cvt_pk_bf16_f32 v{t}, v{b}, v{b+1}")
            a(f"v_cvt_pk_bf16_f32 v{t+1}, v{b+2}, v{b+3}")
            a(f"s_add_u32 s44, s43, {rt*16*pitch + coff}")
            a(f"buffer_store_dwordx2 {vr(t,2)}, v9, s[20:23], s44 offen")
    if job != 3:
        mainloop(False); reduce()
        rowmajor_store(2304, 1152 if job == 1 else 0, None)
        stamp_flush(a, 2, 6, 34, 4, vtmp=1)
        if dyn: dbgstamp(a, 4)
        a(f"s_branch {L_end}")
        return
    Lkv = a.newlabel("kv")
    a("s_cmp_ge_u32 s33, 9")
    a(f"s_cbranch_scc1 {Lkv}")
    mainloop(False); reduce()
    rowmajor_store(1152, 0, math.log2(math.e) / math.sqrt(18.0))
    stamp_flush(a, 2, 6, 34, 4, vtmp=1)
    a(f"s_branch {L_end}")
    a.label(Lkv)
    mainloop(True); reduce()
    a("v_and_b32 v9, 15, v0")
    a("v_and_b32 v10, 1, v8")
    a("v_lshrrev_b32 v11, 1, v8")
    a("v_lshlrev_b32 v11, 3, v11")
    a("v_lshl_add_u32 v12, v10, 5, v9")
    a("v_lshl_add_u32 v12, v12, 4, v11")
    a("v_lshlrev_b32 v13, 2, v9")
    a("v_mul_u32_u24 v14, 320, v10")
    a("v_lshl_add_u32 v14, v9, 4, v14")
    a("v_add_u32 v14, v14, v11")
    for rt in range(5):
        b = R + 16*rt; t = 100 + 2*rt
        a(f"v_cvt_pk_bf16_f32 v{t}, v{b}, v{b+1}")
        a(f"v_cvt_pk_bf16_f32 v{t+1}, v{b+2}, v{b+3}")
    def soffs(rt, mul_tin, mul_kh, base):
        a("s_mul_i32 s44, s32, 5")
        a(f"s_add_u32 s44, s44, {rt}")
        a("s_lshr_b32 s45, s44, 4")
        a(f"s_mul_i32 s45, s45, {KCH}")
        a("s_lshr_b32 s46, s44, 1")
        a("s_and_b32 s46, s46, 7")
        a(f"s_mul_i32 s46, s46, {mul_tin}")
        a("s_add_u32 s45, s45, s46")
        a("s_and_b32 s44, s44, 1")
        a(f"s_mul_i32 s44, s44, {mul_kh}")
        a("s_add_u32 s44, s44, s45")
        if base: a(f"s_add_u32 s44, s44, {base}")
    Lw = [a.newlabel("w") for _ in range(4)]
    for w in range(1, 4):
        a(f"s_cmp_eq_u32 s34, {w}")
        a(f"s_cbranch_scc1 {Lw[w]}")
    for rt in range(5):
        soffs(rt, 1024, 256, 0)
        a(f"buffer_store_dwordx2 {vr(100+2*rt,2)}, v12, s[20:23], s44 offen")
    a(f"s_branch {L_end}")
    a.label(Lw[1])
    a("v_cmp_gt_u32 vcc, 16, v0")
    a("s_and_saveexec_b64 s[50:51], vcc")
    for rt in range(5):
        soffs(rt, 128, 64, KA1_OFF)
        a(f"buffer_store_dword v{100+2*rt}, v13, s[20:23], s44 offen")
    a(f"s_branch {L_end}")
    a.label(Lw[2])
    for rt in range(5):
        soffs(rt, 1280, 640, VA_OFF)
        a(f"buffer_store_dwordx2 {vr(100+2*rt,2)}, v14, s[20:23], s44 offen")
    a(f"s_branch {L_end}")
    a.label(Lw[3])
    a("v_cmp_eq_u32 vcc, 2, v9")
    a("v_mov_b32 v15, 0x3f803f80")
    a("s_nop 1")
    for j in range(10): a(f"v_cndmask_b32 v{100+j}, v{100+j}, v15, vcc")
    a("v_cmp_eq_u32 vcc, 3, v9")
    a("v_mov_b32 v15, 0")
    a("s_nop 1")
    for j in range(10): a(f"v_cndmask_b32 v{100+j}, v{100+j}, v15, vcc")
    a("v_cmp_gt_u32 vcc, 4, v9")
    a("s_and_saveexec_b64 s[50:51], vcc")
    for rt in range(5):
        soffs(rt, 1280, 640, VA_OFF + 256)
        a(f"buffer_store_dwordx2 {vr(100+2*rt,2)}, v14, s[20:23], s44 offen")
    a(f"s_branch {L_end}")

def dbgstamp(a, k):
    if not os.environ.get("DBG3"): return
    a("s_memrealtime s[86:87]")
    a("s_load_dwordx2 s[88:89], s[0:1], 104")
    a("s_waitcnt lgkmcnt(0)")
    make_srd(a, 92, 88, 16*MB, WS_PROF)
    a("s_lshl_b32 s90, s2, 2")
    a("s_add_u32 s90, s90, s34")
    a("s_lshl_b32 s90, s90, 6")
    a("v_mov_b32 v14, 0")
    a("v_mov_b32 v15, s86")
    a(f"buffer_store_dword v15, v14, s[92:95], s90 offen offset:{4*k}")

def gen_k3(a):
    name = "k3_kernel"
    kernel_header(a, name)
    L_end = "L_k3_end"
    a("s_cmp_ge_u32 s2, 496")
    a(f"s_cbranch_scc1 {L_end}")
    a("s_load_dwordx2 s[58:59], s[0:1], 104")
    a("s_waitcnt lgkmcnt(0)")
    make_srd(a, 60, 58, 8192, WS_FLAG)
    a("s_cmp_ge_u32 s2, 256")
    a("s_cbranch_scc1 L_k3_o")
    if os.environ.get("DROPA"):
        a(f"s_and_b32 s3, s2, {os.environ['DROPA']}")
        a("s_cmp_eq_u32 s3, 0")
        a(f"s_cbranch_scc1 {L_end}")
    a("s_mov_b32 s66, s2")
    a("s_mov_b32 s67, 0")
    a("v_mov_b32 v147, 0")
    a("v_mov_b32 v4, 0")
    a("s_lshr_b32 s3, s66, 2")
    a("s_lshl_b32 s3, s3, 7")
    a("s_and_b32 s4, s66, 3")
    a("s_lshl_b32 s68, 0x10000, s4")
    a("v_cmp_eq_u32 vcc, 0, v0")
    a("s_and_saveexec_b64 s[64:65], vcc")
    a("s_cbranch_execz L_k3_c1")
    a("v_mov_b32 v147, s68")
    a("buffer_atomic_or v147, v4, s[60:63], s3 offen sc0")
    a.label("L_k3_c1")
    a("s_mov_b64 exec, s[64:65]")
    a.label("L_k3_abody")
    k3a.gen_k3a_body(a, "L_k3_adone", L_claimed=L_end)
    a.label("L_k3_adone")
    dbgstamp(a, 0)
    a("s_waitcnt vmcnt(0)")
    a("s_barrier")
    a("s_cmp_lg_u32 s34, 0")
    a("s_cbranch_scc1 L_k3_a2")
    a("s_lshr_b32 s3, s66, 2")
    a("s_lshl_b32 s3, s3, 7")
    a("v_mov_b32 v2, 0")
    a("v_mov_b32 v3, 1")
    a("v_cmp_eq_u32 vcc, 0, v0")
    a("s_and_saveexec_b64 s[64:65], vcc")
    a("buffer_atomic_add v3, v2, s[60:63], s3 offen")
    a("s_mov_b64 exec, s[64:65]")
    a.label("L_k3_a2")
    a("s_cmp_eq_u32 s67, 0")
    a(f"s_cbranch_scc1 {L_end}")
    a("s_setprio 0")
    a("s_branch L_k3_next")
    a.label("L_k3_o")
    a("s_sub_u32 s3, s2, 256")
    gen_oproj_body(a, "L_k3_next", 1, 3, L_invalid=L_end)
    a.label("L_k3_next")
    a("s_mov_b64 exec, -1")
    dbgstamp(a, 1)
    a("s_waitcnt lgkmcnt(0)")
    a("s_barrier")
    a("s_sub_u32 s3, s2, 256")
    a("v_lshl_add_u32 v0, s34, 6, v0")
    import common
    sv = common.PROF; common.PROF = False; globals()["PROF"] = False
    gen_oproj_body(a, L_end, 2, 3, NB=5, dyn=True, L_invalid=L_end)
    common.PROF = sv; globals()["PROF"] = sv
    a.label("L_k3_steal")
    a("s_ff1_i32_b64 s68, vcc")
    a("s_nop 3")
    a("v_readlane_b32 s69, v10, s68")
    a("v_readlane_b32 s70, v9, s68")
    a("s_lshr_b32 s69, s69, 16")
    a("s_not_b32 s69, s69")
    a("s_and_b32 s69, s69, 15")
    a("s_ff1_i32_b32 s69, s69")
    a("s_lshl_b32 s71, 0x10000, s69")
    a("v_mov_b32 v11, s71")
    a("v_mov_b32 v12, 0")
    a("v_cmp_eq_u32 vcc, 0, v0")
    a("s_and_saveexec_b64 s[64:65], vcc")
    a("buffer_atomic_or v11, v12, s[60:63], s70 offen sc0")
    a("s_waitcnt vmcnt(0)")
    a("s_mov_b64 exec, s[64:65]")
    a("v_readfirstlane_b32 s72, v11")
    a("s_and_b32 s72, s72, s71")
    a("s_cmp_lg_u32 s72, 0")
    a(f"s_cbranch_scc1 {POLL_LABEL[0]}")
    a("s_lshr_b32 s70, s70, 5")
    a("s_add_u32 s70, s70, s69")
    a("v_mov_b32 v9, 0")
    a("v_mov_b32 v10, s70")
    a("ds_write_b32 v9, v10 offset:16384")
    a("s_waitcnt lgkmcnt(0)")
    a("s_branch L_k3_sync")
    a.label("L_k3_runsteal")
    a("s_mov_b32 s67, 1")
    a("v_mov_b32 v147, 0")
    a("s_mov_b32 s68, 0")
    a("v_lshl_add_u32 v0, s34, 6, v0")
    a("s_branch L_k3_abody")
    a.label(L_end)
    a("s_endpgm")
    return name, kernel_desc(name, 148, 80), "grid=(496,1,1) block=(256,1,1) lds=81920"
```
